```python
import torch

def _softmax(x, axis=-1):
    return torch.softmax(x, dim=axis)
def _gelu(x):
    return torch.nn.functional.gelu(x, approximate="tanh")
def _silu(x):
    return torch.nn.functional.silu(x)
def _sigmoid(x):
    return torch.sigmoid(x)
def _layernorm(x, axis=-1, eps=1e-5):
    m = x.mean(dim=axis, keepdim=True)
    v = x.var(dim=axis, keepdim=True, unbiased=False)
    return (x - m) / torch.sqrt(v + eps)
def _scatter_add(tgt, idx, src, axis=0):
    return tgt.clone().index_add_(axis, idx, src)
def _segment_sum(src, seg, n):
    out = torch.zeros((n,) + src.shape[1:], dtype=src.dtype)
    return out.index_add_(0, seg, src)
def _pad(x, pw):
    flat = tuple(v for pair in reversed(pw) for v in pair)
    return torch.nn.functional.pad(x, flat)

kernel_name = 'interleave_layers__linear_attn_block__glu_gated_glu__prompt'

def setup_inputs():

    _w = (lambda a: (lambda t: t.to(torch.bfloat16) if t.is_floating_point() else t)(torch.as_tensor(a)))
    def _A_setup():
        B, S, D = 1, 2048, 512
        return {
            "x": _w((lambda *s: torch.randn(*s, dtype=torch.bfloat16) * 0.05)(B, S, D)),
            "wqkv": _w((lambda *s: torch.randn(*s, dtype=torch.bfloat16) * 0.05)(D, 3 * D)),
            "wo": _w((lambda *s: torch.randn(*s, dtype=torch.bfloat16) * 0.05)(D, D)),
        }
    _A_in = _A_setup()

    def _B_setup():
        B, S, D, F = 1, 2048, 512, 1792
        return {
            "x": _w((lambda *s: torch.randn(*s, dtype=torch.bfloat16) * 0.05)(B, S, D)),
            "w_gate": _w((lambda *s: torch.randn(*s, dtype=torch.bfloat16) * 0.05)(D, F)),
            "w_up": _w((lambda *s: torch.randn(*s, dtype=torch.bfloat16) * 0.05)(D, F)),
            "w_down": _w((lambda *s: torch.randn(*s, dtype=torch.bfloat16) * 0.05)(F, D)),
        }
    _B_in = _B_setup()

    return {
        "A_x": _A_in["x"],
        "A_wqkv": _A_in["wqkv"],
        "A_wo": _A_in["wo"],
        "B_x": _B_in["x"],
        "B_w_gate": _B_in["w_gate"],
        "B_w_up": _B_in["w_up"],
        "B_w_down": _B_in["w_down"],
    }

def reference(A_x, A_wqkv, A_wo, B_x, B_w_gate, B_w_up, B_w_down):
    def _A_ref(x, wqkv, wo):
        B, S, D = x.shape
        H = 32; Dh = D // H
        qkv = (lambda x, *d: x.permute(*d))((x @ wqkv).reshape(B, S, 3, H, Dh), 2, 0, 3, 1, 4)
        q, k, v = qkv[0], qkv[1], qkv[2]
        phi = lambda t: torch.where(t > 0, t + 1, torch.exp(t)) + 1e-6
        pq, pk = phi(q), phi(k)
        kv = torch.einsum("bhsd,bhse->bhde", pk, v)
        z = torch.einsum("bhsd->bhd", pk)
        num = torch.einsum("bhqd,bhde->bhqe", pq, kv)
        den = torch.einsum("bhqd,bhd->bhq", pq, z)[..., None] + 1e-6
        o = num / den
        return (lambda x, *d: x.permute(*d))(o, 0, 2, 1, 3).reshape(B, S, D) @ wo

    def _B_ref(x, w_gate, w_up, w_down):
        g = torch.einsum("bsd,df->bsf", x, w_gate)
        u = torch.einsum("bsd,df->bsf", x, w_up)
        h = _sigmoid(g) * u
        return torch.einsum("bsf,fd->bsd", h, w_down)

    x = A_x
    x = x + _A_ref(_layernorm(x, axis=-1), A_wqkv, A_wo)
    x = x + _B_ref(_layernorm(x, axis=-1), B_w_gate, B_w_up, B_w_down)
    x = x + _A_ref(_layernorm(x, axis=-1), A_wqkv, A_wo)
    x = x + _B_ref(_layernorm(x, axis=-1), B_w_gate, B_w_up, B_w_down)
    return x
```

```python
import re

REG_RE = re.compile(r'^(-|abs\()?([vas])(\d+)\)?$')
RNG_RE = re.compile(r'^(-|abs\()?([vas])\[(\d+):(\d+)\]\)?$')
TRANS = ('v_exp_f32', 'v_log_f32', 'v_rcp_f32', 'v_rsq_f32', 'v_sqrt_f32', 'v_sin_f32', 'v_cos_f32',
         'v_rcp_iflag_f32')


def regs_of(op):
    op = op.strip()
    m = REG_RE.match(op)
    if m:
        return [m.group(2) + m.group(3)]
    m = RNG_RE.match(op)
    if m:
        return [m.group(2) + str(i) for i in range(int(m.group(3)), int(m.group(4)) + 1)]
    if op == 'vcc':
        return ['vcc']
    if op in ('vcc_lo', 'vcc_hi'):
        return ['vcc']
    if op == 'exec':
        return ['exec']
    if op == 'm0':
        return ['m0']
    return []


class Ins:
    __slots__ = ('text', 'op', 'dst', 'src', 'kind', 'label', 'target', 'tok_def', 'tok_use', 'mfma',
                 'cnt', 'ops', 'flags', 'pre', 'nws')

    def __init__(self, text, tok_def=None, tok_use=None):
        self.text = text
        self.label = None
        self.target = None
        self.tok_def = tok_def
        self.tok_use = tok_use or []
        self.dst = []
        self.src = []
        self.kind = None
        self.cnt = None
        self.mfma = None
        self.pre = []
        self.flags = ''
        self.nws = 1
        t = text.split(';')[0].strip()
        if t.endswith(':'):
            self.kind = 'label'
            self.label = t[:-1]
            self.op = None
            self.nws = 0
            return
        if t == '' or t.startswith('.'):
            self.kind = 'pseudo'
            self.op = None
            self.nws = 0
            return
        parts = t.split(None, 1)
        self.op = op = re.sub(r'_(e32|e64|dpp|sdwa)$', '', parts[0])
        rest = parts[1] if len(parts) > 1 else ''
        ops, depth, cur = [], 0, ''
        for ch in rest:
            if ch in '[(':
                depth += 1
            if ch in '])':
                depth -= 1
            if ch == ',' and depth == 0:
                ops.append(cur.strip())
                cur = ''
            else:
                cur += ch
        if cur.strip():
            ops.append(cur.strip())
        flags = ''
        if ops:
            sp = ops[-1].split(None, 1)
            if len(sp) > 1 and not op.startswith('s_waitcnt'):
                ops[-1] = sp[0]
                flags = sp[1]
        self.ops = ops
        self.flags = flags
        R = [regs_of(o) for o in ops]
        flat = lambda l: [r for x in l for r in x]
        if op.startswith('v_mfma'):
            self.kind = 'mfma'
            self.dst = R[0]
            self.src = flat(R[1:])
            passes = 8 if '32x32' in op else 4
            self.mfma = dict(passes=passes, d=R[0], a=R[1], b=R[2], c=R[3])
        elif op.startswith('v_'):
            self.kind = 'valu'
            if op.startswith('v_cmp'):
                self.dst = R[0]
                self.src = flat(R[1:])
            elif op in ('v_add_co_u32', 'v_sub_co_u32', 'v_addc_co_u32', 'v_subb_co_u32', 'v_mad_u64_u32'):
                self.dst = R[0] + R[1]
                self.src = flat(R[2:])
            elif op.startswith('v_permlane') and 'swap' in op:
                self.dst = R[0] + R[1]
                self.src = R[0] + R[1]
            elif op in ('v_fmac_f32', 'v_dot2c_f32_bf16', 'v_pk_fmac_f16', 'v_writelane_b32'):
                self.dst = R[0]
                self.src = flat(R)
            elif op == 'v_nop':
                pass
            else:
                self.dst = R[0]
                self.src = flat(R[1:])
            if 'dpp' in parts[0] or 'row_' in flags or 'quad_perm' in flags:
                self.flags += ' DPP'
                self.src = self.src + self.dst
        elif op.startswith('ds_'):
            self.kind = 'ds'
            self.cnt = 'lgkm'
            if op.startswith('ds_read') or op.startswith('ds_bpermute') or op.startswith('ds_swizzle') \
                    or op.startswith('ds_permute') or '_rtn' in op:
                self.dst = R[0]
                self.src = flat(R[1:])
            else:
                self.src = flat(R)
        elif op.startswith('buffer_') or op.startswith('global_'):
            self.kind = 'vmem'
            self.cnt = 'vm'
            fl = flags.split()
            if op in ('buffer_wbl2', 'buffer_inv'):
                pass
            elif 'lds' in fl or '_lds_' in op:
                self.src = flat(R) + ['m0']
                self.flags += ' DMA'
            elif '_load' in op:
                self.dst = R[0]
                self.src = flat(R[1:])
            elif '_atomic' in op and 'sc0' in fl:
                if op.startswith('buffer_'):
                    self.dst = R[0]
                    self.src = flat(R)
                else:
                    self.dst = R[0]
                    self.src = flat(R[1:])
            else:
                self.src = flat(R)
        elif op.startswith('s_load') or op.startswith('s_buffer_load') or op in ('s_memtime', 's_memrealtime') \
                or op.startswith('s_atomic'):
            self.kind = 'smem'
            self.cnt = 'smem'
            self.dst = R[0]
            self.src = flat(R[1:]) + (R[0] if op.startswith('s_atomic') else [])
        elif op in ('s_branch',) or op.startswith('s_cbranch'):
            self.kind = 'branch'
            self.target = ops[0]
            if 'vcc' in op:
                self.src = ['vcc']
            if 'exec' in op:
                self.src = ['exec']
        elif op == 's_endpgm':
            self.kind = 'end'
        elif op == 's_waitcnt':
            self.kind = 'wait'
        elif op == 's_nop':
            self.kind = 'salu'
            self.nws = int(ops[0], 0) + 1
        elif op.startswith('s_cmp') or op in ('s_barrier', 's_setprio', 's_sleep', 's_bitcmp0_b32',
                                              's_bitcmp1_b32', 's_sethalt'):
            self.kind = 'salu'
            self.src = flat(R)
        elif op.startswith('s_'):
            self.kind = 'salu'
            self.dst = R[0]
            self.src = flat(R[1:])
            if 'saveexec' in op:
                self.dst = self.dst + ['exec']
                self.src = self.src + ['exec']
            if op in ('s_addk_i32', 's_mulk_i32'):
                self.src = self.src + R[0]
        else:
            raise ValueError('unknown instruction: ' + text)

    def store_data(self):
        if self.kind != 'vmem' or not re.search(r'store_dwordx[34]', self.op):
            return []
        o = self.ops[0] if self.op.startswith('buffer_') else self.ops[1]
        return regs_of(o)


def parse_wait(text):
    vm = re.search(r'vmcnt\((\d+)\)', text)
    lg = re.search(r'lgkmcnt\((\d+)\)', text)
    return (int(vm.group(1)) if vm else None, int(lg.group(1)) if lg else None)


class Asm:
    def __init__(self):
        self.ins = []
        self._uid = 0

    def __call__(self, text, tok=None):
        lines = [l.strip() for l in text.strip().split('\n')]
        lines = [l for l in lines if l and not l.startswith(';')]
        for n, l in enumerate(lines):
            self.ins.append(Ins(l, tok_def=tok if n == len(lines) - 1 else None))

    def wait(self, *toks):
        i = Ins('')
        i.tok_use = list(toks)
        self.ins.append(i)

    def label(self, name):
        self.ins.append(Ins(name + ':'))

    def uid(self, p='L'):
        self._uid += 1
        return '%s_%d' % (p, self._uid)

    def comment(self, s):
        self.ins.append(Ins('; ' + s))

    def _cfg(self):
        ins = self.ins
        lab = {x.label: i for i, x in enumerate(ins) if x.kind == 'label'}
        succ = []
        for i, x in enumerate(ins):
            s = []
            if x.kind == 'end':
                pass
            elif x.kind == 'branch':
                s.append(lab[x.target])
                if x.op != 's_branch' and i + 1 < len(ins):
                    s.append(i + 1)
            elif i + 1 < len(ins):
                s.append(i + 1)
            succ.append(s)
        pred = [[] for _ in ins]
        for i, s in enumerate(succ):
            for j in s:
                pred[j].append(i)
        return succ, pred

    def _waits(self, entries):
        ins = self.ins
        succ, pred = self._cfg()
        n = len(ins)
        need = [None] * n
        state_in = [None] * n
        lab = {x.label: i for i, x in enumerate(ins) if x.kind == 'label'}
        work = []
        for e in entries:
            state_in[lab[e]] = {}
            work.append(lab[e])

        def apply_wait(st, vm, lg):
            out = {}
            for k, (c, y) in st.items():
                if c == 'vm' and vm is not None and y >= vm:
                    continue
                if c == 'lgkm' and lg is not None and (lg == 0 or (y >= lg and '#smem' not in st)):
                    continue
                if c == 'smem' and lg == 0:
                    continue
                out[k] = (c, y)
            return out

        def merge(a, b):
            out = dict(a)
            ch = False
            for k, (c, y) in b.items():
                if k not in out:
                    out[k] = (c, y)
                    ch = True
                else:
                    c0, y0 = out[k]
                    if c0 != c:
                        raise ValueError('counter class clash on %s' % k)
                    if y < y0:
                        out[k] = (c, y)
                        ch = True
            return out, ch

        import heapq
        heapq.heapify(work)
        inwork = set(work)
        while work:
            i = heapq.heappop(work)
            inwork.discard(i)
            x = ins[i]
            st = state_in[i]
            vm = lg = None
            keys = list(x.src) + list(x.dst) + ['tok:' + t for t in x.tok_use]
            for k in keys:
                if k in st:
                    c, y = st[k]
                    if c == 'vm':
                        vm = min(y, 63) if vm is None else min(vm, y)
                    elif c == 'lgkm':
                        yy = 0 if '#smem' in st else min(y, 15)
                        lg = yy if lg is None else min(lg, yy)
                    else:
                        lg = 0
            if need[i] is not None:
                pv, pl = need[i]
                vm = pv if vm is None else (vm if pv is None else min(vm, pv))
                lg = pl if lg is None else (lg if pl is None else min(lg, pl))
            if vm is not None or lg is not None:
                need[i] = (vm, lg)
                st = apply_wait(st, vm, lg)
            if x.kind == 'wait':
                st = apply_wait(st, *parse_wait(x.text))
            if x.cnt:
                cls = x.cnt
                grp = 'vm' if cls == 'vm' else 'lgkm'
                new = {}
                for k, (c, y) in st.items():
                    if (c == 'vm') == (grp == 'vm'):
                        new[k] = (c, min(y + 1, 64))
                    else:
                        new[k] = (c, y)
                st = new
                for r in x.dst:
                    st[r] = (cls, 0)
                if x.tok_def:
                    st['tok:' + x.tok_def] = (cls, 0)
                if cls == 'smem':
                    st['#smem'] = ('smem', 0)
            for j in succ[i]:
                if state_in[j] is None:
                    state_in[j] = st
                    ch = True
                else:
                    state_in[j], ch = merge(state_in[j], st)
                if ch and j not in inwork:
                    heapq.heappush(work, j)
                    inwork.add(j)
        out = []
        for i, x in enumerate(ins):
            if need[i] is not None:
                vm, lg = need[i]
                t = 's_waitcnt'
                if vm is not None:
                    t += ' vmcnt(%d)' % vm
                if lg is not None:
                    t += ' lgkmcnt(%d)' % lg
                out.append(Ins(t))
            out.append(x)
        self.ins = out

    @staticmethod
    def _hazard(p, c):
        w = 0
        pd = set(p.dst)
        if p.kind == 'valu':
            vd = {r for r in pd if r[0] in 'va' and r != 'vcc'}
            sd = {r for r in pd if r[0] == 's' or r == 'vcc'}
            if c.kind == 'mfma' and vd & set(c.src):
                w = max(w, 2)
            if c.kind == 'valu':
                if c.op.startswith('v_permlane') and vd & set(c.src):
                    w = max(w, 2)
                if 'DPP' in c.flags and vd & set(c.src):
                    w = max(w, 2)
                if c.op in ('v_readlane_b32', 'v_readfirstlane_b32') and vd & set(c.src):
                    w = max(w, 1)
                if p.op in TRANS and vd & set(c.src):
                    w = max(w, 1)
                if sd & set(c.src):
                    w = max(w, 4 if c.op in ('v_readlane_b32', 'v_writelane_b32') else 2)
                if not p.op.startswith('v_pk_') and ('op_sel' in p.flags or 'dst_sel' in p.flags) and vd & (set(c.src) | set(c.dst)):
                    w = max(w, 1)
            if c.kind == 'mfma' and p.op in TRANS and vd & set(c.src):
                w = max(w, 2)
            if c.kind == 'vmem' and sd & set(c.src):
                w = max(w, 5)
            if c.kind in ('salu', 'smem', 'branch') and sd & set(c.src):
                w = max(w, 4)
            if p.op.startswith('v_dot2') and c.kind in ('valu', 'mfma', 'vmem', 'ds'):
                if vd & (set(c.src) | set(c.dst)):
                    same_c = c.op == p.op and not (vd & set(regs_of(c.ops[1]) + regs_of(c.ops[2])))
                    if not same_c:
                        w = max(w, 3)
        if p.kind == 'mfma':
            ps = p.mfma['passes']
            d = set(p.mfma['d'])
            if c.kind == 'mfma':
                if d & (set(c.mfma['a']) | set(c.mfma['b'])):
                    w = max(w, 12 if ps == 8 else 8)
                if d & set(c.mfma['c']):
                    if not (c.mfma['c'] == p.mfma['d'] and c.mfma['passes'] == ps):
                        w = max(w, 10 if ps == 8 else 6)
                elif d & set(c.mfma['d']):
                    w = max(w, 12 if ps == 8 else 8)
            elif c.kind in ('valu', 'vmem', 'ds'):
                if d & (set(c.src) | set(c.dst)):
                    w = max(w, 12 if ps == 8 else 8)
                if c.kind == 'valu' and set(p.mfma['c']) & set(c.dst):
                    w = max(w, 7 if ps == 8 else 3)
        if p.kind == 'salu' and 'm0' in pd and c.kind == 'vmem' and 'DMA' in c.flags:
            w = max(w, 1)
        if p.kind == 'salu' and 'exec' in pd and c.kind == 'valu' and 'DPP' in c.flags:
            w = max(w, 1)
        sdat = p.store_data()
        if sdat and set(sdat) & set(c.dst):
            w = max(w, 2)
        if p.kind == 'ds' and p.op in ('ds_write_b128', 'ds_write_b96') and c.kind == 'valu':
            pass
        return w

    def _nops(self):
        MAXW = 12
        changed = True
        while changed:
            changed = False
            ins = self.ins
            succ, pred = self._cfg()
            out = []
            add = [0] * len(ins)
            for i, c in enumerate(ins):
                if c.op is None or c.kind in ('wait', 'end'):
                    continue
                need = 0
                stack = [(j, 0) for j in pred[i]]
                seen = {}
                while stack:
                    j, dist = stack.pop()
                    if j in seen and seen[j] <= dist:
                        continue
                    seen[j] = dist
                    p = ins[j]
                    if p.op is not None:
                        h = self._hazard(p, c)
                        if h > dist:
                            need = max(need, h - dist)
                    nd = dist + p.nws + add[j]
                    if nd < MAXW:
                        for k in pred[j]:
                            stack.append((k, nd))
                add[i] = need
            for i, c in enumerate(ins):
                if add[i]:
                    out.append(Ins('s_nop %d' % (add[i] - 1)))
                    changed = True
                out.append(c)
            self.ins = out

    def finalize(self, entries):
        self._waits(entries)
        self._nops()
        return '\n'.join(('' if x.kind == 'label' else '  ') + x.text for x in self.ins if x.text != '')

    def maxreg(self, lo=0, hi=None):
        mx = {'v': -1, 'a': -1, 's': -1}
        for x in self.ins[lo:hi]:
            for r in list(x.dst) + list(x.src):
                if r[0] in mx and r[1:].isdigit():
                    mx[r[0]] = max(mx[r[0]], int(r[1:]))
        return mx


def v(i, n=1):
    return 'v%d' % i if n == 1 else 'v[%d:%d]' % (i, i + n - 1)


def a(i, n=1):
    return 'a%d' % i if n == 1 else 'a[%d:%d]' % (i, i + n - 1)


def s(i, n=1):
    return 's%d' % i if n == 1 else 's[%d:%d]' % (i, i + n - 1)


def f2u(x):
    import struct
    return '0x%08x' % struct.unpack('<I', struct.pack('<f', x))[0]
```

```python
import sys, math
from asmlib import Asm, v, a, s, f2u

KB = 1024
NAME = 'interleave_layers__linear_attn_block__glu_gated_glu__prompt'
off = 0
def alloc(n):
    global off
    o = off
    off += (n + 4095) // 4096 * 4096
    return o
WQKV = alloc(16 * 99 * KB + 4 * KB)
WO = alloc(512 * KB)
WGU = alloc(16 * 231 * KB + 4 * KB)
WD = alloc(1792 * KB)
X = [alloc(2048 * KB) for _ in range(4)]
ST = [alloc(64 * 4 * KB) for _ in range(4)]
PQ = [alloc(2048 * KB) for _ in range(2)]
H = [alloc(7168 * KB) for _ in range(2)]
KVB = 32 * 17 * 64
KV = [alloc(2 * KVB)]
KV.append(KV[0] + KVB)
WS_BYTES = 268435456
LOG2E = math.log2(math.e)

CFG = dict(x13=(4, 2), x3=(4, 2), x24=(8, 1), dummy=0)

MF = 'v_mfma_f32_32x32x16_bf16'


def prologue(A, nwg, lab):
    A(f'''
    s_cmp_ge_u32 s2, {nwg}
    s_cbranch_scc1 {lab}_end
    s_load_dwordx2 s[8:9], s[0:1], 72
    v_lshrrev_b32 v1, 6, v0
    v_and_b32 v0, 63, v0
    v_readfirstlane_b32 s20, v1
    v_lshlrev_b32 v1, 4, v0
    s_mov_b32 s10, {WS_BYTES}
    s_mov_b32 s11, 0x20000
    ''')


def decode_id(A, nr, nc, grid, sr, sc):
    XR, XC = grid
    lr, lc = nr // XR, nc // XC
    lg = lambda x: int(math.log2(x))
    A(f'''
    s_and_b32 s16, s2, 7
    s_lshr_b32 s17, s2, 3
    s_and_b32 s18, s16, {XR - 1}
    s_lshl_b32 s18, s18, {lg(lr)}
    s_and_b32 s19, s17, {lr - 1}
    s_add_u32 {sr}, s18, s19
    s_lshr_b32 s18, s16, {lg(XR)}
    s_lshl_b32 s18, s18, {lg(lc)}
    s_lshr_b32 s19, s17, {lg(lr)}
    s_add_u32 {sc}, s18, s19
    ''')


def swap_add(A, r, t):
    A(f'''
    v_mov_b32 {v(t)}, {v(r)}
    v_permlane32_swap_b32 {v(t)}, {v(r)}
    v_add_f32 {v(r)}, {v(t)}, {v(r)}
    ''')


def stats_part(A, f, t, vaddr, soff, imm=0):
    A(f'v_add_f32 {v(t)}, {v(f)}, {v(f + 1)}')
    A(f'v_add_f32 {v(t + 1)}, {v(f + 2)}, {v(f + 3)}')
    for i in range(4, 16, 2):
        A(f'v_add_f32 {v(t)}, {v(t)}, {v(f + i)}')
        A(f'v_add_f32 {v(t + 1)}, {v(t + 1)}, {v(f + i + 1)}')
    A(f'v_add_f32 {v(t)}, {v(t)}, {v(t + 1)}')
    swap_add(A, t, t + 2)
    A(f'v_mul_f32 {v(t)}, {f2u(1 / 32)}, {v(t)}')
    for i in range(16):
        A(f'v_sub_f32 {v(f + i)}, {v(f + i)}, {v(t)}')
    A(f'v_mul_f32 {v(t + 1)}, {v(f)}, {v(f)}')
    A(f'v_mul_f32 {v(t + 2)}, {v(f + 1)}, {v(f + 1)}')
    for i in range(2, 16, 2):
        A(f'v_fmac_f32 {v(t + 1)}, {v(f + i)}, {v(f + i)}')
        A(f'v_fmac_f32 {v(t + 2)}, {v(f + i + 1)}, {v(f + i + 1)}')
    A(f'v_add_f32 {v(t + 1)}, {v(t + 1)}, {v(t + 2)}')
    swap_add(A, t + 1, t + 2)
    A(f'buffer_store_dwordx2 {v(t, 2)}, {v(vaddr)}, s[8:11], {soff} offen offset:{imm}')


def stats_load(A, dst, vaddr, soff):
    for q in range(8):
        A(f'buffer_load_dwordx2 {v(dst + 2 * q, 2)}, {v(vaddr)}, s[8:11], {soff} offen offset:{q * 256}')


def stats_combine(r, mean, rstd, t, xf):
    L = []
    L.append(f'v_add_f32 {v(mean)}, {v(r)}, {v(r + 2)}')
    L.append(f'v_add_f32 {v(rstd)}, {v(r + 1)}, {v(r + 3)}')
    for q in range(2, 8):
        L.append(f'v_add_f32 {v(mean)}, {v(mean)}, {v(r + 2 * q)}')
        L.append(f'v_add_f32 {v(rstd)}, {v(rstd)}, {v(r + 2 * q + 1)}')
    L += [f'v_mov_b32 {v(t)}, {v(mean)}',
          f'v_permlane32_swap_b32 {v(t)}, {v(mean)}',
          f'v_add_f32 {v(mean)}, {v(t)}, {v(mean)}',
          f'v_mul_f32 {v(mean)}, {f2u(1 / 16)}, {v(mean)}']
    for q in range(8):
        L.append(f'v_sub_f32 {v(r + 2 * q)}, {v(r + 2 * q)}, {v(mean)}')
    L.append(f'v_mul_f32 {v(t)}, {v(r)}, {v(r)}')
    for q in range(1, 8):
        L.append(f'v_fmac_f32 {v(t)}, {v(r + 2 * q)}, {v(r + 2 * q)}')
    L += [f'v_fmamk_f32 {v(rstd)}, {v(t)}, {f2u(32.0)}, {v(rstd)}',
          f'v_mov_b32 {v(t)}, {v(rstd)}',
          f'v_permlane32_swap_b32 {v(t)}, {v(rstd)}',
          f'v_add_f32 {v(rstd)}, {v(t)}, {v(rstd)}',
          f'v_mov_b32 {v(t)}, {f2u(1e-5)}',
          f'v_fmamk_f32 {v(rstd)}, {v(rstd)}, {f2u(1 / 512)}, {v(t)}',
          f'v_rsq_f32 {v(rstd)}, {v(rstd)}',
          f'v_sub_f32 {v(t)}, 0, {v(mean)}',
          f'v_cvt_pk_bf16_f32 {v(xf + 1)}, {v(t)}, 0',
          f'v_lshlrev_b32 {v(t + 1)}, 16, {v(xf + 1)}',
          f'v_sub_f32 {v(t + 1)}, {v(t)}, {v(t + 1)}',
          f'v_cvt_pk_bf16_f32 {v(xf)}, {v(t)}, {v(t + 1)}',
          f'v_mov_b32 {v(xf + 3)}, {v(xf + 1)}',
          f'v_mov_b32 {v(xf + 2)}, {v(xf)}']
    return L


def emit_with_fill(A, main, fill, per):
    fill = list(fill)
    k = 0
    for g in main:
        for x in g:
            x() if callable(x) else A(x)
        for _ in range(per):
            if k < len(fill):
                x = fill[k]
                x() if callable(x) else A(x)
                k += 1
    for x in fill[k:]:
        x() if callable(x) else A(x)


def k0(A, lab):
    A.label(lab)
    prologue(A, 296, lab)
    A(f'''
    s_load_dwordx4 s[24:27], s[0:1], 0
    s_load_dwordx4 s[28:31], s[0:1], 16
    s_load_dwordx4 s[32:35], s[0:1], 32
    s_load_dwordx2 s[36:37], s[0:1], 48
    s_waitcnt lgkmcnt(0)
    s_cmp_ge_u32 s2, 232
    s_cbranch_scc1 {lab}_x
    ''')
    A(f'''
    s_cmp_ge_u32 s2, 176
    s_cbranch_scc1 {lab}_wd
    s_cmp_ge_u32 s2, 64
    s_cbranch_scc1 {lab}_wgu
    s_cmp_ge_u32 s2, 48
    s_cbranch_scc1 {lab}_wo
    ''')
    A(f'''
    s_and_b32 s49, s2, 3
    s_lshr_b32 s16, s2, 2
    s_mov_b64 s[40:41], s[26:27]
    s_add_u32 s42, s26, 128
    s_addc_u32 s43, s27, 0
    s_mov_b32 s44, 3072
    s_mul_i32 s45, s49, {128 * 3072}
    s_lshl_b32 s17, s16, 8
    s_add_u32 s45, s45, s17
    s_lshr_b32 s17, s16, 2
    s_and_b32 s16, s16, 3
    s_lshl_b32 s16, s16, 2
    s_add_u32 s16, s16, s20
    s_mul_i32 s16, s16, 99
    s_add_u32 s16, s16, s17
    s_add_u32 s48, s16, 96
    s_mul_i32 s18, s49, 24
    s_add_u32 s16, s16, s18
    s_lshl_b32 s46, s16, 10
    s_add_u32 s46, s46, {WQKV}
    s_lshl_b32 s48, s48, 10
    s_add_u32 s48, s48, {WQKV}
    s_mov_b32 s47, 3072
    s_lshl_b32 s50, s20, 6
    s_mov_b32 s51, 32
    s_branch {lab}_w
    ''')
    A.label(lab + '_wo')
    A(f'''
    s_sub_u32 s16, s2, 48
    s_and_b32 s49, s16, 3
    s_lshr_b32 s16, s16, 2
    s_mov_b64 s[40:41], s[28:29]
    s_add_u32 s42, s28, 128
    s_addc_u32 s43, s29, 0
    s_mov_b32 s44, 1024
    s_lshl_b32 s45, s49, 17
    s_lshl_b32 s17, s16, 8
    s_add_u32 s45, s45, s17
    s_lshl_b32 s16, s16, 2
    s_add_u32 s16, s16, s20
    s_lshr_b32 s17, s16, 1
    s_lshl_b32 s17, s17, 5
    s_lshl_b32 s18, s49, 3
    s_add_u32 s17, s17, s18
    s_lshl_b32 s17, s17, 1
    s_and_b32 s16, s16, 1
    s_add_u32 s17, s17, s16
    s_lshl_b32 s46, s17, 10
    s_add_u32 s46, s46, {WO}
    s_mov_b32 s47, 2048
    s_mov_b32 s48, -1
    s_lshl_b32 s50, s20, 6
    s_mov_b32 s51, 32
    s_branch {lab}_w
    ''')
    A.label(lab + '_wgu')
    A(f'''
    s_sub_u32 s16, s2, 64
    s_and_b32 s49, s16, 3
    s_lshr_b32 s16, s16, 2
    s_mov_b64 s[40:41], s[32:33]
    s_mov_b64 s[42:43], s[34:35]
    s_mov_b32 s44, 3584
    s_mul_i32 s45, s49, {128 * 3584}
    s_lshl_b32 s17, s16, 7
    s_add_u32 s45, s45, s17
    s_lshl_b32 s16, s16, 2
    s_add_u32 s16, s16, s20
    s_mul_i32 s17, s16, 9363
    s_lshr_b32 s17, s17, 16
    s_mul_i32 s18, s17, 7
    s_sub_u32 s18, s16, s18
    s_mul_i32 s17, s17, 231
    s_cmp_lt_u32 s18, 3
    s_cbranch_scc1 {lab}_wgu_a
    s_sub_u32 s18, s18, 3
    s_mul_i32 s18, s18, 33
    s_add_u32 s17, s17, s18
    s_add_u32 s17, s17, 99
    s_add_u32 s48, s17, 32
    s_lshl_b32 s19, s49, 3
    s_mov_b32 s47, 1024
    s_branch {lab}_wgu_b
    ''')
    A.label(lab + '_wgu_a')
    A(f'''
    s_add_u32 s17, s17, s18
    s_add_u32 s48, s17, 96
    s_mul_i32 s19, s49, 24
    s_mov_b32 s47, 3072
    ''')
    A.label(lab + '_wgu_b')
    A(f'''
    s_add_u32 s17, s17, s19
    s_lshl_b32 s46, s17, 10
    s_add_u32 s46, s46, {WGU}
    s_lshl_b32 s48, s48, 10
    s_add_u32 s48, s48, {WGU}
    s_lshl_b32 s50, s20, 5
    s_mov_b32 s51, 128
    s_branch {lab}_w
    ''')
    A.label(lab + '_wd')
    A(f'''
    s_sub_u32 s16, s2, 176
    s_mul_i32 s17, s16, 4682
    s_lshr_b32 s17, s17, 16
    s_mul_i32 s18, s17, 14
    s_sub_u32 s49, s16, s18
    s_mov_b32 s16, s17
    s_mov_b64 s[40:41], s[36:37]
    s_add_u32 s42, s36, 128
    s_addc_u32 s43, s37, 0
    s_mov_b32 s44, 1024
    s_lshl_b32 s45, s49, 17
    s_lshl_b32 s17, s16, 8
    s_add_u32 s45, s45, s17
    s_lshl_b32 s16, s16, 2
    s_add_u32 s16, s16, s20
    s_lshr_b32 s17, s16, 1
    s_mul_i32 s17, s17, 112
    s_lshl_b32 s18, s49, 3
    s_add_u32 s17, s17, s18
    s_lshl_b32 s17, s17, 1
    s_and_b32 s16, s16, 1
    s_add_u32 s17, s17, s16
    s_lshl_b32 s46, s17, 10
    s_add_u32 s46, s46, {WD}
    s_mov_b32 s47, 2048
    s_mov_b32 s48, -1
    s_lshl_b32 s50, s20, 6
    s_mov_b32 s51, 32
    ''')
    A.label(lab + '_w')
    A(f'''
    v_lshrrev_b32 v2, 4, v0
    s_lshl_b32 s16, s20, 2
    v_add_u32 v2, s16, v2
    v_mul_lo_u32 v2, v2, s44
    v_and_b32 v3, 7, v0
    v_lshlrev_b32 v3, 4, v3
    v_add3_u32 v2, v2, v3, s45
    v_and_b32 v3, 8, v0
    v_cmp_eq_u32 vcc, 0, v3
    v_mov_b32 v4, s42
    v_mov_b32 v5, s40
    v_cndmask_b32 v4, v4, v5, vcc
    v_mov_b32 v5, s43
    v_mov_b32 v6, s41
    v_cndmask_b32 v5, v5, v6, vcc
    v_add_co_u32 v4, vcc, v4, v2
    v_addc_co_u32 v5, vcc, 0, v5, vcc
    s_lshl_b32 s16, s44, 4
    s_lshl_b32 s17, s20, 10
    ''')
    for j in range(8):
        A(f's_add_u32 m0, s17, {j * 4096}')
        A('global_load_lds_dwordx4 v[4:5], off', tok='k0dma')
        if j < 7:
            A('v_add_co_u32 v4, vcc, s16, v4\nv_addc_co_u32 v5, vcc, 0, v5, vcc')
    A(f'''
    v_lshrrev_b32 v2, 5, v0
    v_lshlrev_b32 v2, 2, v2
    v_bfe_u32 v3, v0, 2, 2
    v_add_u32 v2, v2, v3
    v_lshlrev_b32 v2, 8, v2
    v_and_b32 v3, 3, v0
    v_lshlrev_b32 v3, 3, v3
    v_add3_u32 v2, v2, v3, s50
    v_bfe_u32 v3, v0, 4, 1
    v_mul_lo_u32 v3, v3, s51
    v_add_u32 v2, v2, v3
    v_mov_b32 v8, 0
    v_mov_b32 v9, 0
    s_mov_b32 s52, 0x3f803f80
    ''')
    A.wait('k0dma')
    A('s_barrier')
    for j in range(8):
        A(f'ds_read_b64_tr_b16 {v(16 + 4 * j, 2)}, v2 offset:{j * 4096}')
        A(f'ds_read_b64_tr_b16 {v(18 + 4 * j, 2)}, v2 offset:{j * 4096 + 2048}')
    for j in range(8):
        A(f'buffer_store_dwordx4 {v(16 + 4 * j, 4)}, v1, s[8:11], s46 offen')
        A('s_add_u32 s46, s46, s47')
        for d in range(4):
            A(f'v_dot2_f32_bf16 {v(8 + (d & 1))}, {v(16 + 4 * j + d)}, s52, {v(8 + (d & 1))}')
    A(f'''
    s_cmp_eq_u32 s48, -1
    s_cbranch_scc1 {lab}_end
    v_add_f32 v8, v8, v9
    ''')
    swap_add(A, 8, 9)
    A(f'''
    v_cvt_pk_bf16_f32 v10, v8, v8
    v_lshlrev_b32 v9, 16, v10
    v_sub_f32 v9, v8, v9
    v_cvt_pk_bf16_f32 v11, v9, 0
    v_and_b32 v2, 31, v0
    v_lshlrev_b32 v2, 4, v2
    s_lshr_b32 s16, s49, 1
    s_lshl_b32 s16, s16, 9
    s_and_b32 s17, s49, 1
    s_lshl_b32 s17, s17, 3
    s_add_u32 s16, s16, s17
    s_add_u32 s48, s48, s16
    buffer_store_dwordx2 v[10:11], v2, s[8:11], s48 offen
    s_endpgm
    ''')
    A.label(lab + '_x')
    A(f'''
    s_sub_u32 s21, s2, 232
    s_mov_b32 s12, s24
    s_mov_b32 s13, s25
    s_mov_b32 s14, {2048 * 1024}
    s_mov_b32 s15, 0x20000
    v_and_b32 v2, 31, v0
    v_lshlrev_b32 v3, 3, v2
    v_lshlrev_b32 v2, 10, v2
    v_lshrrev_b32 v4, 5, v0
    v_lshl_add_u32 v2, v4, 4, v2
    s_lshl_b32 s16, s21, 15
    s_lshl_b32 s17, s20, 8
    s_add_u32 s17, s17, s16
    ''')
    for j in range(8):
        A(f'buffer_load_dwordx4 {v(16 + 4 * j, 4)}, v2, s[12:15], s17 offen offset:{j * 32}')
    A(f'''
    v_mov_b32 v8, 0
    v_mov_b32 v9, 0
    v_mov_b32 v10, 0
    v_mov_b32 v11, 0
    s_mul_i32 s18, s21, 1088
    s_mul_i32 s19, s20, 272
    s_add_u32 s18, s18, s19
    s_add_u32 s18, s18, {KV[0]}
    s_mov_b64 exec, 0x1ffff
    buffer_store_dwordx4 v[8:11], v1, s[8:11], s18 offen
    s_mov_b64 exec, -1
    s_lshl_b32 s18, s20, 13
    s_add_u32 s18, s18, s16
    s_add_u32 s18, s18, {X[0]}
    s_lshl_b32 s19, s21, 12
    s_lshl_b32 s22, s20, 10
    s_add_u32 s19, s19, s22
    s_add_u32 s19, s19, {ST[0]}
    s_mov_b32 s23, 0xffff0000
    ''')
    for j in range(8):
        r = 16 + 4 * j
        A(f'v_permlane32_swap_b32 {v(r)}, {v(r + 2)}')
        A(f'v_permlane32_swap_b32 {v(r + 1)}, {v(r + 3)}')
        if j == 4:
            A('s_add_u32 s18, s18, 4096')
        A(f'buffer_store_dwordx4 {v(r, 4)}, v1, s[8:11], s18 offen offset:{(j & 3) * 1024}')
    for p in range(4):
        for d in range(8):
            A(f'v_lshlrev_b32 {v(48 + 2 * d)}, 16, {v(16 + 8 * p + d)}')
            A(f'v_and_b32 {v(49 + 2 * d)}, s23, {v(16 + 8 * p + d)}')
        stats_part(A, 48, 64 + 4 * p, 3, 's19', p * 256)
    A.label(lab + '_end')
    A('s_endpgm')
    return dict(grid=296, lds=32 * KB, v=84, acc=0)


def k1(A, labs):
    lab = labs[0]
    for L, l in enumerate(labs):
        A('.p2align 8')
        A.label(l)
        A(f's_mov_b32 s60, {X[2 * L]}\ns_mov_b32 s61, {ST[2 * L]}\ns_mov_b32 s62, {PQ[L]}\ns_mov_b32 s63, {KV[L]}')
        A(f's_branch {lab}_body')
    A.label(lab + '_body')
    prologue(A, 256, lab)
    decode_id(A, 16, 16, CFG['x13'], 's21', 's22')
    ACC = 16
    WB = 64
    STR = 88
    MEAN, RSTD, T, XF = 104, 105, 106, 108
    LW = 100 * KB
    LR = LW + 512
    A(f'''
    s_lshl_b32 s23, s21, 2
    s_add_u32 s23, s23, s20
    s_lshl_b32 s24, s23, 15
    s_add_u32 s24, s24, s60
    s_lshl_b32 s25, s23, 12
    s_add_u32 s25, s25, s61
    s_mul_i32 s26, s22, {99 * KB}
    s_add_u32 s26, s26, {WQKV}
    s_mul_i32 s27, s20, 3072
    s_add_u32 s28, s26, s27
    v_and_b32 v2, 31, v0
    v_lshrrev_b32 v3, 5, v0
    v_lshlrev_b32 v4, 3, v2
    v_lshl_add_u32 v4, v3, 11, v4
    v_add_u32 v5, 0x10000, v1
    s_waitcnt lgkmcnt(0)
    ''')

    def dma(j):
        if j < 8:
            A(f's_add_u32 m0, s27, {j * 12 * KB}')
            for q in range(3):
                A(f'buffer_load_dwordx4 v1, s[8:11], s28 offen offset:{q * 1024} lds', tok=f'c{j}')
            A(f's_add_u32 s28, s28, {12 * KB}')
        else:
            A(f's_lshl_b32 s27, s20, 10\ns_add_u32 m0, s27, {96 * KB}\ns_add_u32 s28, s26, s27\n'
              f's_add_u32 s28, s28, {96 * KB}')
            A(f'buffer_load_dwordx4 v1, s[8:11], s28 offen lds', tok=f'c{j}')

    def xload(j):
        for q in range(4):
            A(f'buffer_load_dwordx4 {a(16 * j + 4 * q, 4)}, v1, s[8:11], s24 offen offset:{q * 1024}')
        A('s_add_u32 s24, s24, 4096')

    for j in range(8):
        dma(j)
        xload(j)
    dma(8)

    def rd(kg):
        out = []
        for t in range(3):
            p = (3 * kg + t) * KB
            b = WB + 12 * (kg & 1) + 4 * t
            out.append(f'ds_read_b128 {v(b, 4)}, {"v1" if p < 65536 else "v5"} offset:{p & 65535}')
        return out

    def mm(kg):
        xf = a(4 * kg, 4) if kg < 32 else v(XF, 4)
        b = WB + 12 * (kg & 1)
        c = lambda t: '0' if kg == 0 else v(ACC + 16 * t, 16)
        return [f'{MF} {v(ACC, 16)}, {v(b, 4)}, {xf}, {c(0)}',
                f'{MF} {v(ACC + 16, 16)}, {xf}, {v(b + 4, 4)}, {c(1)}',
                f'{MF} {v(ACC + 32, 16)}, {xf}, {v(b + 8, 4)}, {c(2)}']

    stat = stats_combine(STR, MEAN, RSTD, T, XF)
    stat += [f's_lshl_b32 s16, s20, 7', f'v_lshl_add_u32 v6, v2, 2, s16', f'v_lshl_add_u32 v7, v3, 4, s16',
             f'v_add_u32 v6, {LW}, v6', f'v_add_u32 v7, {LW}, v7',
             f'ds_write_b32 v6, {v(RSTD)}']
    stat += [f'ds_read_b128 {v(STR + 4 * j, 4)}, v7 offset:{32 * j}' for j in range(4)]
    groups = []
    for kg in range(34):
        g0 = []
        if kg % 4 == 0 and kg <= 32:
            j = kg // 4
            g0.append(lambda j=j: (A.wait(f'c{j}'), A('s_barrier')))
            if j == 2:
                g0.append(lambda: stats_load(A, STR, 4, 's25'))
        r = rd(kg) if kg <= 32 else [None] * 3
        m = mm(kg - 1) if kg >= 1 else [None] * 3
        for t in range(3):
            g = g0 if t == 0 else []
            g += [x for x in (r[t], m[t]) if x]
            groups.append(g)
    emit_with_fill(A, groups[:48], [], 0)
    emit_with_fill(A, groups[48:96], stat, 2)
    emit_with_fill(A, groups[96:], [], 0)

    Q, Kt, Vt = ACC, ACC + 16, ACC + 32
    P = 64
    A(f's_mov_b32 s16, {f2u(1e-6)}\ns_mov_b32 s17, {f2u(LOG2E)}')
    A(f'v_mul_f32 {v(MEAN)}, s17, {v(RSTD)}')
    for i in range(16):
        A(f'v_mul_f32 {v(Kt + i)}, {v(Kt + i)}, {v(STR + i)}')
        A(f'v_mul_f32 {v(Vt + i)}, {v(Vt + i)}, {v(STR + i)}')
    for i in range(0, 16, 2):
        A(f'''
        v_mul_f32 {v(T)}, s17, {v(Kt + i)}
        v_mul_f32 {v(T + 1)}, s17, {v(Kt + i + 1)}
        v_exp_f32_e64 {v(T)}, {v(T)} clamp
        v_exp_f32_e64 {v(T + 1)}, {v(T + 1)} clamp
        v_max_f32 {v(Kt + i)}, 0, {v(Kt + i)}
        v_max_f32 {v(Kt + i + 1)}, 0, {v(Kt + i + 1)}
        v_add_f32 {v(T)}, s16, {v(T)}
        v_add_f32 {v(T + 1)}, s16, {v(T + 1)}
        v_add_f32 {v(Kt + i)}, {v(Kt + i)}, {v(T)}
        v_add_f32 {v(Kt + i + 1)}, {v(Kt + i + 1)}, {v(T + 1)}
        v_cvt_pk_bf16_f32 {v(P + 8 + i // 2)}, {v(Kt + i)}, {v(Kt + i + 1)}
        v_cvt_pk_bf16_f32 {v(P + 16 + i // 2)}, {v(Vt + i)}, {v(Vt + i + 1)}
        ''')
    D2 = Vt
    A(f'{MF} {v(D2, 16)}, {v(P + 16, 4)}, {v(P + 8, 4)}, 0')
    A(f'{MF} {v(D2, 16)}, {v(P + 20, 4)}, {v(P + 12, 4)}, {v(D2, 16)}')
    for i in range(1, 16):
        A(f'v_add_f32 {v(Kt)}, {v(Kt)}, {v(Kt + i)}')
    swap_add(A, Kt, T)
    A(f'''
    v_bfe_u32 v6, v0, 4, 1
    v_mul_u32_u24 v6, 272, v6
    v_bfe_u32 v7, v0, 2, 1
    v_lshl_add_u32 v6, v7, 3, v6
    v_bfe_u32 v7, v0, 3, 1
    v_lshl_add_u32 v6, v7, 2, v6
    v_and_b32 v7, 3, v0
    v_add_u32 v6, v6, v7
    s_mul_i32 s18, s20, 2176
    s_add_u32 s18, s18, {LR}
    v_lshl_add_u32 v6, v6, 2, s18
    v_lshl_add_u32 v7, v3, 8, v6
    v_and_b32 v8, 16, v0
    v_cmp_eq_u32 vcc, 0, v8
    ds_write_b32 v6, {v(Kt)} offset:1024
    ''')
    for i in range(8):
        A(f'v_cndmask_b32 {v(Kt + 1 + i)}, {v(D2 + 8 + i)}, {v(D2 + i)}, vcc')
        A(f'ds_write_b32 v7, {v(Kt + 1 + i)} offset:{(8 * (i >> 2) + (i & 3)) * 64}', tok='kvw')
    A(f'''
    s_mul_i32 s18, s20, 544
    v_lshl_add_u32 v6, v0, 2, s18
    s_mul_i32 s19, s22, 2176
    s_add_u32 s19, s19, s63
    v_add_u32 v7, {LR}, v6
    ''')
    A.wait('kvw')
    A('s_barrier')
    for q in range(3):
        for w in range(4):
            A(f'ds_read_b32 {v(Vt + 4 * q + w)}, v7 offset:{q * 256 + w * 2176}')
    def qpair(i):
        A(f'''
        v_mul_f32 {v(T)}, {v(MEAN)}, {v(Q + i)}
        v_mul_f32 {v(T + 1)}, {v(MEAN)}, {v(Q + i + 1)}
        v_exp_f32_e64 {v(T)}, {v(T)} clamp
        v_exp_f32_e64 {v(T + 1)}, {v(T + 1)} clamp
        v_fma_f32 {v(Q + i)}, {v(Q + i)}, {v(RSTD)}, s16
        v_fma_f32 {v(Q + i + 1)}, {v(Q + i + 1)}, {v(RSTD)}, s16
        v_max_f32 {v(Q + i)}, s16, {v(Q + i)}
        v_max_f32 {v(Q + i + 1)}, s16, {v(Q + i + 1)}
        v_add_f32 {v(Q + i)}, {v(Q + i)}, {v(T)}
        v_add_f32 {v(Q + i + 1)}, {v(Q + i + 1)}, {v(T + 1)}
        v_cvt_pk_bf16_f32 {v(P + i // 2)}, {v(Q + i)}, {v(Q + i + 1)}
        ''')
    qpair(0)
    qpair(2)
    for q in range(3):
        b = Vt + 4 * q
        A(f'v_add_f32 {v(b)}, {v(b)}, {v(b + 1)}\nv_add_f32 {v(b + 2)}, {v(b + 2)}, {v(b + 3)}\n'
          f'v_add_f32 {v(b)}, {v(b)}, {v(b + 2)}')
        if q == 2:
            A('s_mov_b64 exec, 0xff')
        A(f'buffer_atomic_add_f32 {v(b)}, v6, s[8:11], s19 offen offset:{q * 256}')
    A('s_mov_b64 exec, -1')
    for i in range(4, 16, 2):
        qpair(i)
    A(f'''
    s_lshr_b32 s16, s23, 1
    s_lshl_b32 s16, s16, 4
    s_add_u32 s16, s16, s22
    s_lshl_b32 s16, s16, 12
    s_and_b32 s17, s23, 1
    s_lshl_b32 s17, s17, 10
    s_add_u32 s16, s16, s17
    s_add_u32 s16, s16, s62
    buffer_store_dwordx4 {v(P, 4)}, v1, s[8:11], s16 offen
    buffer_store_dwordx4 {v(P + 4, 4)}, v1, s[8:11], s16 offen offset:2048
    ''')
    A.label(lab + '_end')
    A('s_endpgm')
    return dict(grid=256, lds=LR + 4 * 2176 + 512, v=112, acc=128)


def reduce_epilogue(A, lab, ACC, RES, final_test):
    for sg in range(1, 4):
        A(f'''
        s_xor_b32 s16, s20, {sg}
        s_mul_i32 s16, s16, {3 * 4096}
        s_add_u32 s16, s16, {(sg - 1) * 4096}
        v_add_u32 v6, s16, v1
        ''')
        for jj in range(4):
            A(f'ds_write_b128 v6, {v(ACC + 16 * sg + 4 * jj, 4)} offset:{jj * 1024}', tok='red')
    A(f's_mul_i32 s16, s20, {3 * 4096}\nv_add_u32 v6, s16, v1\ns_mov_b32 s17, 0xffff0000\nv_lshlrev_b32 v4, 3, v2')
    T = RES + 8
    for d in range(8):
        A(f'''
        v_lshlrev_b32 {v(T)}, 16, {v(RES + d)}
        v_and_b32 {v(T + 1)}, s17, {v(RES + d)}
        v_add_f32 {v(ACC + 2 * d)}, {v(ACC + 2 * d)}, {v(T)}
        v_add_f32 {v(ACC + 2 * d + 1)}, {v(ACC + 2 * d + 1)}, {v(T + 1)}
        ''')
    A.wait('red')
    A('s_barrier')
    for sg in range(1, 4):
        for jj in range(4):
            A(f'ds_read_b128 {v(ACC + 16 * sg + 4 * jj, 4)}, v6 offset:{(sg - 1) * 4096 + jj * 1024}')
    for sg in range(1, 4):
        for i in range(16):
            A(f'v_add_f32 {v(ACC + i)}, {v(ACC + i)}, {v(ACC + 16 * sg + i)}')
    for d in range(8):
        A(f'v_cvt_pk_bf16_f32 {v(RES + d)}, {v(ACC + 2 * d)}, {v(ACC + 2 * d + 1)}')
    if final_test:
        A(f's_cmp_eq_u32 s64, 1\ns_cbranch_scc1 {lab}_final')
    A(f'buffer_store_dwordx4 {v(RES, 4)}, v1, s[8:11], s30 offen')
    A(f'buffer_store_dwordx4 {v(RES + 4, 4)}, v1, s[8:11], s30 offen offset:1024')
    stats_part(A, ACC, T, 4, 's31')
    if final_test:
        A('s_endpgm')
        A.label(lab + '_final')
        for f in range(2):
            r = RES + 4 * f
            A(f'v_permlane32_swap_b32 {v(r)}, {v(r + 2)}\nv_permlane32_swap_b32 {v(r + 1)}, {v(r + 3)}')
        A(f'''
        v_lshlrev_b32 v4, 10, v2
        v_lshl_add_u32 v4, v3, 4, v4
        buffer_store_dwordx4 {v(RES, 4)}, v4, s[12:15], s32 offen
        buffer_store_dwordx4 {v(RES + 4, 4)}, v4, s[12:15], s32 offen offset:32
        ''')


def tile_addr(A):
    A(f'''
    s_lshr_b32 s16, s20, 1
    s_and_b32 s17, s20, 1
    s_lshl_b32 s18, s21, 1
    s_add_u32 s18, s18, s16
    s_lshl_b32 s19, s22, 1
    s_add_u32 s19, s19, s17
    s_lshl_b32 s28, s18, 4
    s_add_u32 s28, s28, s19
    s_lshl_b32 s31, s28, 8
    s_add_u32 s31, s31, s62
    s_lshl_b32 s28, s28, 11
    s_add_u32 s30, s28, s61
    s_add_u32 s28, s28, s60
    s_lshl_b32 s32, s18, 15
    s_lshl_b32 s19, s19, 6
    s_add_u32 s32, s32, s19
    s_lshl_b32 s16, s16, 10
    s_lshl_b32 s17, s17, 10
    v_add_u32 v8, s16, v1
    v_xor_b32 v9, 0x400, v8
    v_add_u32 v10, s17, v1
    v_xor_b32 v11, 0x400, v10
    v_and_b32 v2, 31, v0
    v_lshrrev_b32 v3, 5, v0
    ''')


def k2(A, labs):
    lab = labs[0]
    for L, l in enumerate(labs):
        A('.p2align 8')
        A.label(l)
        A(f's_mov_b32 s60, {X[2 * L]}\ns_mov_b32 s61, {X[2 * L + 1]}\ns_mov_b32 s62, {ST[2 * L + 1]}\n'
          f's_mov_b32 s63, {PQ[L]}\ns_mov_b32 s65, {KV[L]}')
        A(f's_branch {lab}_body')
    A.label(lab + '_body')
    prologue(A, 256, lab)
    decode_id(A, 32, 8, CFG['x24'], 's21', 's22')
    tile_addr(A)
    ACC, RES = 16, 80
    KVR = 96
    D = 160
    OF = 224
    RC = 240
    A(f'''
    s_lshl_b32 s24, s21, 16
    s_lshl_b32 s16, s20, 14
    s_add_u32 s24, s24, s16
    s_add_u32 s24, s24, s63
    s_lshl_b32 s25, s22, 16
    s_add_u32 s25, s25, s16
    s_add_u32 s25, s25, {WO}
    s_mul_i32 s26, s20, {8 * 1088}
    s_add_u32 s26, s26, s65
    v_min_u32 v5, 16, v2
    v_lshlrev_b32 v5, 6, v5
    v_lshl_add_u32 v5, v3, 5, v5
    s_waitcnt lgkmcnt(0)
    ''')
    for hh in range(8):
        if hh in (3, 6):
            A(f's_add_u32 s26, s26, {3 * 1088}')
        o = (hh % 3) * 1088
        A(f'buffer_load_dwordx4 {v(KVR + 8 * hh, 4)}, v5, s[8:11], s26 offen offset:{o}')
        A(f'buffer_load_dwordx4 {v(KVR + 8 * hh + 4, 4)}, v5, s[8:11], s26 offen offset:{o + 16}')
        o = (hh & 1) * 2048
        A(f'buffer_load_dwordx4 {a(8 * hh, 4)}, v8, s[8:11], s24 offen offset:{o}')
        A(f'buffer_load_dwordx4 {a(8 * hh + 4, 4)}, v9, s[8:11], s24 offen offset:{o}')
        A(f'buffer_load_dwordx4 {a(64 + 8 * hh, 4)}, v10, s[8:11], s25 offen offset:{o}')
        A(f'buffer_load_dwordx4 {a(64 + 8 * hh + 4, 4)}, v11, s[8:11], s25 offen offset:{o}')
        if hh & 1:
            A('s_add_u32 s24, s24, 4096\ns_add_u32 s25, s25, 4096')
    A(f'buffer_load_dwordx4 {v(RES, 4)}, v1, s[8:11], s28 offen')
    A(f'buffer_load_dwordx4 {v(RES + 4, 4)}, v1, s[8:11], s28 offen offset:1024')
    A(f's_mov_b32 s16, {f2u(1e-6)}')

    def num(hh):
        k = KVR + 8 * hh
        for d in range(4):
            A(f'v_cvt_pk_bf16_f32 {v(k + d)}, {v(k + 2 * d)}, {v(k + 2 * d + 1)}')
        for r in range(2):
            A(f'{MF} {v(D + 32 * (hh & 1) + 16 * r, 16)}, {v(k, 4)}, {a(8 * hh + 4 * r, 4)}, 0')

    def fin(hh):
        for r in range(2):
            d = D + 32 * (hh & 1) + 16 * r
            o = OF + 8 * (hh & 1) + 4 * r
            A(f'v_add_f32 {v(RC + r)}, s16, {v(d + 8)}\nv_rcp_f32 {v(RC + r)}, {v(RC + r)}')
        for r in range(2):
            d = D + 32 * (hh & 1) + 16 * r
            o = OF + 8 * (hh & 1) + 4 * r
            for i in range(8):
                A(f'v_mul_f32 {v(d + i)}, {v(d + i)}, {v(RC + r)}')
            for i in range(4):
                A(f'v_cvt_pk_bf16_f32 {v(o + i)}, {v(d + 2 * i)}, {v(d + 2 * i + 1)}')

    def gemm(hh):
        for r in range(2):
            for c in range(2):
                t = ACC + 16 * (2 * r + c)
                A(f'{MF} {v(t, 16)}, {a(64 + 8 * hh + 4 * c, 4)}, {v(OF + 8 * (hh & 1) + 4 * r, 4)}, '
                  f'{"0" if hh == 0 else v(t, 16)}')
    num(0)
    for hh in range(8):
        if hh + 1 < 8:
            num(hh + 1)
        fin(hh)
        gemm(hh)
    reduce_epilogue(A, lab, ACC, RES, False)
    A.label(lab + '_end')
    A('s_endpgm')
    return dict(grid=256, lds=48 * KB, v=244, acc=128)


def k3(A, labs):
    lab = labs[0]
    for L, l in enumerate(labs):
        A('.p2align 8')
        A.label(l)
        A(f's_mov_b32 s60, {X[2 * L + 1]}\ns_mov_b32 s61, {ST[2 * L + 1]}\ns_mov_b32 s62, {H[L]}')
        A(f's_branch {lab}_body')
    A.label(lab + '_body')
    prologue(A, 256, lab)
    decode_id(A, 16, 16, CFG['x3'], 's21', 's22')
    ACC = 16
    WB = 80
    STR = 104
    MEAN, RSTD, T, XF = 120, 121, 122, 124
    E = 128
    RING = 156
    A(f'''
    s_lshl_b32 s23, s21, 2
    s_add_u32 s23, s23, s20
    s_lshl_b32 s24, s23, 15
    s_add_u32 s24, s24, s60
    s_lshl_b32 s25, s23, 12
    s_add_u32 s25, s25, s61
    s_mul_i32 s26, s22, {231 * KB}
    s_add_u32 s26, s26, {WGU}
    s_mul_i32 s27, s20, 3072
    s_add_u32 s28, s26, s27
    s_lshr_b32 s16, s23, 1
    s_mul_i32 s16, s16, 112
    s_mul_i32 s17, s22, 7
    s_add_u32 s16, s16, s17
    s_lshl_b32 s16, s16, 11
    s_and_b32 s17, s23, 1
    s_lshl_b32 s17, s17, 10
    s_add_u32 s16, s16, s17
    s_add_u32 s29, s16, s62
    v_and_b32 v2, 31, v0
    v_lshrrev_b32 v3, 5, v0
    v_lshlrev_b32 v4, 3, v2
    v_lshl_add_u32 v4, v3, 11, v4
    v_add_u32 v5, 0x10000, v1
    v_add_u32 v6, 0x20000, v1
    s_waitcnt lgkmcnt(0)
    ''')

    def dma(j):
        if j < 19:
            A(f's_add_u32 m0, s27, {(j * 12 % RING) * KB}')
            for q in range(3):
                A(f'buffer_load_dwordx4 v1, s[8:11], s28 offen offset:{q * 1024} lds', tok=f'c{j}')
            A(f's_add_u32 s28, s28, {12 * KB}')
        elif j == 19:
            A(f's_lshl_b32 s27, s20, 10\ns_add_u32 m0, s27, {(228 % RING) * KB}\ns_add_u32 s28, s26, s27\n'
              f's_add_u32 s28, s28, {228 * KB}')
            A(f'buffer_load_dwordx4 v1, s[8:11], s28 offen lds', tok=f'c{j}')

    def xload(j):
        if j < 8:
            for q in range(4):
                A(f'buffer_load_dwordx4 {a(16 * j + 4 * q, 4)}, v1, s[8:11], s24 offen offset:{q * 1024}')
            A('s_add_u32 s24, s24, 4096')

    PD = 6
    for j in range(PD):
        dma(j)
        xload(j)
        if j == 1:
            stats_load(A, STR, 4, 's25')

    def item(p):
        if p < 99:
            return p % 3, p // 3
        return 3 + (p - 99) // 33, (p - 99) % 33
    accreg = lambda t: ACC + 16 * (t if t < 4 else t - 4)
    NB = 6
    LAG = 3

    def rd(p):
        ad = (p % RING) * KB
        return f'ds_read_b128 {v(WB + 4 * (p % NB), 4)}, {("v1", "v5", "v6")[ad >> 16]} offset:{ad & 65535}'

    def mm(p):
        t, kg = item(p)
        xf = a(4 * kg, 4) if kg < 32 else v(XF, 4)
        return f'{MF} {v(accreg(t), 16)}, {v(WB + 4 * (p % NB), 4)}, {xf}, {"0" if kg == 0 else v(accreg(t), 16)}'

    def epi(t):
        g = accreg(t)
        pk = E + 8 + 4 * (t & 1)
        L = []
        for i0 in range(0, 8, 4):
            R = range(i0, i0 + 4)
            L += [f'v_mul_f32 {v(E + i)}, {v(MEAN)}, {v(g + i)}' for i in R]
            L += [f'v_exp_f32 {v(E + i)}, {v(E + i)}' for i in R]
            L += [f'v_fma_f32 {v(E + i)}, {v(E + i)}, {v(RSTD)}, {v(RSTD)}' for i in R]
            L += [f'v_rcp_f32 {v(E + i)}, {v(E + i)}' for i in R]
            L += [f'v_mul_f32 {v(E + i)}, {v(E + i)}, {v(g + 8 + i)}' for i in R]
            L += [f'v_cvt_pk_bf16_f32 {v(pk + i // 2)}, {v(E + i)}, {v(E + i + 1)}' for i in R[::2]]
        L.append(f'buffer_store_dwordx4 {v(pk, 4)}, v1, s[8:11], s29 offen offset:{(t & 1) * 2048}')
        if t & 1:
            L.append('s_add_u32 s29, s29, 4096')
        return L

    stat = stats_combine(STR, MEAN, RSTD, T, XF)
    stat += [f'v_mul_f32 {v(MEAN)}, {f2u(-LOG2E)}, {v(RSTD)}', f'v_rcp_f32 {v(RSTD)}, {v(RSTD)}']
    groups = []
    for p in range(231 + LAG):
        g = []
        if p % 12 == 0 and p < 231:
            j = p // 12
            g.append(lambda j=j: (A.wait(f'c{j}'), A('s_barrier'), dma(j + PD), xload(j + PD)))
        if p < 231:
            g.append(rd(p))
        if p >= LAG:
            g.append(mm(p - LAG))
        groups.append(g)
    b = lambda t: 99 + 33 * t + LAG + 1
    emit_with_fill(A, groups[:24], [], 0)
    emit_with_fill(A, groups[24:90], stat, 1)
    emit_with_fill(A, groups[90:b(0) + 1], [], 0)
    emit_with_fill(A, groups[b(0) + 1:b(1)], epi(0) + epi(1), 3)
    emit_with_fill(A, groups[b(1):b(2)], epi(2) + epi(3), 3)
    emit_with_fill(A, groups[b(2):b(3)], [''] * 0 + epi(4), 2)
    emit_with_fill(A, groups[b(3):], epi(5), 2)
    for x in epi(6):
        A(x)
    A.label(lab + '_end')
    A('s_endpgm')
    return dict(grid=256, lds=RING * KB, v=144, acc=128)


def k4(A, labs):
    lab = labs[0]
    for L, l in enumerate(labs):
        A('.p2align 8')
        A.label(l)
        A(f's_mov_b32 s60, {X[2 * L + 1]}\ns_mov_b32 s61, {X[2]}\ns_mov_b32 s62, {ST[2]}\n'
          f's_mov_b32 s63, {H[L]}\ns_mov_b32 s64, {L}')
        A(f's_branch {lab}_body')
    A.label(lab + '_body')
    prologue(A, 256, lab)
    A(f's_load_dwordx2 s[12:13], s[0:1], 56\ns_mov_b32 s14, {2048 * 1024}\ns_mov_b32 s15, 0x20000')
    decode_id(A, 32, 8, CFG['x24'], 's21', 's22')
    tile_addr(A)
    ACC, RES = 16, 80
    A(f'''
    s_mul_i32 s16, s20, {56 * KB}
    s_mul_i32 s24, s21, {224 * KB}
    s_add_u32 s24, s24, s16
    s_add_u32 s24, s24, s63
    s_mul_i32 s25, s22, {224 * KB}
    s_add_u32 s25, s25, s16
    s_add_u32 s25, s25, {WD}
    s_waitcnt lgkmcnt(0)
    ''')
    NS = 15

    def ld(st):
        b = 16 * (st % NS)
        o = (st & 1) * 2048
        A(f'buffer_load_dwordx4 {a(b, 4)}, v10, s[8:11], s25 offen offset:{o}')
        A(f'buffer_load_dwordx4 {a(b + 8, 4)}, v8, s[8:11], s24 offen offset:{o}')
        A(f'buffer_load_dwordx4 {a(b + 4, 4)}, v11, s[8:11], s25 offen offset:{o}')
        A(f'buffer_load_dwordx4 {a(b + 12, 4)}, v9, s[8:11], s24 offen offset:{o}')
        if st & 1:
            A('s_add_u32 s24, s24, 4096\ns_add_u32 s25, s25, 4096')
    for st in range(NS):
        ld(st)
    for st in range(28):
        b = 16 * (st % NS)
        for r, c in ((0, 0), (0, 1), (1, 0), (1, 1)):
            t = ACC + 16 * (2 * r + c)
            A(f'{MF} {v(t, 16)}, {a(b + 4 * c, 4)}, {a(b + 8 + 4 * r, 4)}, {"0" if st == 0 else v(t, 16)}')
        if st + NS < 28:
            ld(st + NS)
        if st + NS == 28:
            A(f'buffer_load_dwordx4 {v(RES, 4)}, v1, s[8:11], s28 offen')
            A(f'buffer_load_dwordx4 {v(RES + 4, 4)}, v1, s[8:11], s28 offen offset:1024')
    reduce_epilogue(A, lab, ACC, RES, True)
    A.label(lab + '_end')
    A('s_endpgm')
    return dict(grid=256, lds=48 * KB, v=92, acc=240)


def descriptor(name, info):
    acc_off = (info['v'] + 3) // 4 * 4
    return f'''.amdhsa_kernel {name}
  .amdhsa_next_free_vgpr {acc_off + info['acc']}
  .amdhsa_next_free_sgpr 96
  .amdhsa_accum_offset {acc_off}
  .amdhsa_group_segment_fixed_size 0
  .amdhsa_kernarg_size 80
  .amdhsa_user_sgpr_count 2
  .amdhsa_user_sgpr_kernarg_segment_ptr 1
  .amdhsa_system_sgpr_workgroup_id_x 1
  .amdhsa_float_denorm_mode_32 3
.end_amdhsa_kernel
'''


def build(cfg=None):
    if cfg:
        CFG.update(cfg)
    A = Asm()
    infos = {}
    A('.p2align 8')
    infos['k0_kernel'] = k0(A, 'k0_kernel')
    for fn, n in ((k1, 'k1'), (k2, 'k2'), (k3, 'k3'), (k4, 'k4')):
        labs = [n + 'a_kernel', n + 'b_kernel']
        lo = len(A.ins)
        inf = fn(A, labs)
        mx = A.maxreg(lo)
        assert mx['v'] < inf['v'] and mx['a'] < max(inf['acc'], 1), (n, mx, inf)
        for l in labs:
            infos[l] = inf
    if CFG['dummy']:
        A('.p2align 8')
        A.label('nop_kernel')
        A('s_endpgm')
        infos['nop_kernel'] = dict(grid=256, lds=0, v=8, acc=0)
    order = ['k0_kernel'] + [k + L + '_kernel' for L in 'ab' for k in ('k1', 'k2', 'k3', 'k4')]
    order = ['nop_kernel'] * CFG['dummy'] + order
    body = A.finalize(list(infos))
    head = ''.join(f"; @launch kernel={k} grid=({infos[k]['grid']},1,1) block=(256,1,1) lds={infos[k]['lds']}\n"
                   for k in order)
    head += '.amdgcn_target "amdgcn-amd-amdhsa--gfx950"\n.text\n'
    head += ''.join(f'.globl {k}\n.type {k},@function\n' for k in infos)
    tail = '\n.section .rodata,"a"\n' + ''.join('.p2align 6\n' + descriptor(k, i) for k, i in infos.items())
    return head + body + tail


if __name__ == '__main__':
    import json
    out = sys.argv[1] if len(sys.argv) > 1 else f'cdna_kernels/{NAME}.s'
    cfg = json.loads(sys.argv[2]) if len(sys.argv) > 2 else None
    open(out, 'w').write(build(cfg))
    print('wrote', out)
```

```python
import sys, math
from asmlib import Asm, v, a, s, f2u

KB = 1024
NAME = 'interleave_layers__linear_attn_block__glu_gated_glu__prompt'
KN = NAME + '_kernel'
off = 0


def alloc(n):
    global off
    o = off
    off += (n + 4095) // 4096 * 4096
    return o


WQKV = alloc(16 * 96 * KB)
WO = alloc(512 * KB)
WGU = alloc(16 * 224 * KB)
WD = alloc(1792 * KB)
XB = alloc(4 * 2048 * KB)
X = [XB + j * 2048 * KB for j in range(4)]
SB = alloc(4 * 256 * KB)
ST = [SB + j * 256 * KB for j in range(4)]
OB = alloc(2 * 2048 * KB)
HB = alloc(2 * 7168 * KB)
KVS = 256 * 2176
KVP = alloc(2 * KVS)
CSQ = alloc(256 * 384)
CSG = alloc(256 * 1024)
FL = alloc(20 * KB)
XFL, OFL, HFL, CFL = FL, FL + 8 * KB, FL + 12 * KB, FL + 16 * KB
DIAG = 128 << 20
WS_BYTES = 268435456
LOG2E = math.log2(math.e)
MF = 'v_mfma_f32_32x32x16_bf16'

RING = 144 * KB
L_RED = 96 * KB
L_XQ = 144 * KB
L_XG = 147 * KB
L_RS = 154 * KB
L_KV = 155 * KB
LDS = 160 * KB

W, RB, C, RB32, RB64, CB, LAY, XCC = 's20', 's21', 's22', 's23', 's24', 's25', 's26', 's27'
TOFF, SOFF, XFA = 's28', 's29', 's30'
ACC, RES = 16, 80
CFG = dict(diag=0, force_safe=0, wd_bubble=12, wd_k3=28, xdepth=8, hdepth=10)
NST = [0]


def stamp(A, real=False):
    if not CFG['diag']:
        return
    i = NST[0]
    NST[0] += 1
    A(f'{"s_memrealtime" if real else "s_memtime"} s[66:67]\ns_waitcnt lgkmcnt(0)\nv_writelane_b32 v15, s66, {i}')


def stamp_flush(A, seg):
    if not CFG['diag']:
        return
    A(f'''
    s_lshl_b32 s16, s2, 2
    s_add_u32 s16, s16, {W}
    s_mul_i32 s16, s16, 3
    s_add_u32 s16, s16, {seg}
    s_lshl_b32 s16, s16, 8
    s_add_u32 s16, s16, {DIAG}
    v_lshlrev_b32 v7, 2, v0
    buffer_store_dword v15, v7, s[8:11], s16 offen
    v_mov_b32 v15, 0
    ''')
    NST[0] = 0


def swap_add(A, r, t):
    A(f'''
    v_mov_b32 {v(t)}, {v(r)}
    v_permlane32_swap_b32 {v(t)}, {v(r)}
    v_add_f32 {v(r)}, {v(t)}, {v(r)}
    ''')


def stats_part(A, f, t, soff, sc, tok=None):
    A(f'v_add_f32 {v(t)}, {v(f)}, {v(f + 1)}')
    A(f'v_add_f32 {v(t + 1)}, {v(f + 2)}, {v(f + 3)}')
    for i in range(4, 16, 2):
        A(f'v_add_f32 {v(t)}, {v(t)}, {v(f + i)}')
        A(f'v_add_f32 {v(t + 1)}, {v(t + 1)}, {v(f + i + 1)}')
    A(f'v_add_f32 {v(t)}, {v(t)}, {v(t + 1)}')
    swap_add(A, t, t + 2)
    A(f'v_mul_f32 {v(t)}, {f2u(1 / 32)}, {v(t)}')
    for i in range(16):
        A(f'v_sub_f32 {v(f + i)}, {v(f + i)}, {v(t)}')
    A(f'v_mul_f32 {v(t + 1)}, {v(f)}, {v(f)}')
    A(f'v_mul_f32 {v(t + 2)}, {v(f + 1)}, {v(f + 1)}')
    for i in range(2, 16, 2):
        A(f'v_fmac_f32 {v(t + 1)}, {v(f + i)}, {v(f + i)}')
        A(f'v_fmac_f32 {v(t + 2)}, {v(f + i + 1)}, {v(f + i + 1)}')
    A(f'v_add_f32 {v(t + 1)}, {v(t + 1)}, {v(t + 2)}')
    swap_add(A, t + 1, t + 2)
    A(f'buffer_store_dwordx2 {v(t, 2)}, v12, s[8:11], {soff} offen {sc}', tok=tok)


def stats_load(A, dst, soff):
    for q in range(8):
        A(f'buffer_load_dwordx2 {v(dst + 2 * q, 2)}, v4, s[8:11], {soff} offen offset:{q * 256} sc1')


def stats_combine(r, mean, rstd, t, xf):
    L = []
    L.append(f'v_add_f32 {v(mean)}, {v(r)}, {v(r + 2)}')
    L.append(f'v_add_f32 {v(rstd)}, {v(r + 1)}, {v(r + 3)}')
    for q in range(2, 8):
        L.append(f'v_add_f32 {v(mean)}, {v(mean)}, {v(r + 2 * q)}')
        L.append(f'v_add_f32 {v(rstd)}, {v(rstd)}, {v(r + 2 * q + 1)}')
    L += [f'v_mov_b32 {v(t)}, {v(mean)}',
          f'v_permlane32_swap_b32 {v(t)}, {v(mean)}',
          f'v_add_f32 {v(mean)}, {v(t)}, {v(mean)}',
          f'v_mul_f32 {v(mean)}, {f2u(1 / 16)}, {v(mean)}']
    for q in range(8):
        L.append(f'v_sub_f32 {v(r + 2 * q)}, {v(r + 2 * q)}, {v(mean)}')
    L.append(f'v_mul_f32 {v(t)}, {v(r)}, {v(r)}')
    for q in range(1, 8):
        L.append(f'v_fmac_f32 {v(t)}, {v(r + 2 * q)}, {v(r + 2 * q)}')
    L += [f'v_fmamk_f32 {v(rstd)}, {v(t)}, {f2u(32.0)}, {v(rstd)}',
          f'v_mov_b32 {v(t)}, {v(rstd)}',
          f'v_permlane32_swap_b32 {v(t)}, {v(rstd)}',
          f'v_add_f32 {v(rstd)}, {v(t)}, {v(rstd)}',
          f'v_mov_b32 {v(t)}, {f2u(1e-5)}',
          f'v_fmamk_f32 {v(rstd)}, {v(rstd)}, {f2u(1 / 512)}, {v(t)}',
          f'v_rsq_f32 {v(rstd)}, {v(rstd)}',
          f'v_sub_f32 {v(t)}, 0, {v(mean)}',
          f'v_cvt_pk_bf16_f32 {v(xf + 1)}, {v(t)}, 0',
          f'v_lshlrev_b32 {v(t + 1)}, 16, {v(xf + 1)}',
          f'v_sub_f32 {v(t + 1)}, {v(t)}, {v(t + 1)}',
          f'v_cvt_pk_bf16_f32 {v(xf)}, {v(t)}, {v(t + 1)}',
          f'v_mov_b32 {v(xf + 3)}, 0',
          f'v_mov_b32 {v(xf + 2)}, 0']
    return L


def run(A, x):
    x() if callable(x) else A(x)


def emit_with_fill(A, main, fill, per):
    fill = list(fill)
    k = 0
    for g in main:
        for x in g:
            run(A, x)
        for _ in range(per):
            if k < len(fill):
                run(A, fill[k])
                k += 1
    for x in fill[k:]:
        run(A, x)


def poll(A, vaddr, soff, val, width=1, srd='s[8:11]'):
    lab = A.uid('poll')
    A('s_mov_b32 s58, 0')
    A.label(lab)
    A(f's_add_u32 s58, s58, 1\ns_cmp_gt_u32 s58, 0x200000\ns_cbranch_scc1 {lab}_x')
    if width == 1:
        A(f'buffer_load_dword v14, {vaddr}, {srd}, {soff} offen sc1')
    else:
        A(f'buffer_load_dwordx2 v[140:141], {vaddr}, {srd}, {soff} offen sc1\nv_min_u32 v14, v140, v141')
    A(f'v_cmp_gt_u32 vcc, {val}, v14\ns_cbranch_vccnz {lab}')
    A.label(lab + '_x')


def flag(A, addr, val, sc):
    A(f'''
    v_mov_b32 v14, {val}
    s_mov_b64 exec, 1
    buffer_store_dword v14, v13, s[8:11], {addr} offen {sc}
    s_mov_b64 exec, -1
    ''')


def lds_rd(dst, ad):
    return f'ds_read_b128 {dst}, {("v1", "v5", "v6")[ad >> 16]} offset:{ad & 65535}'


def dma_chunk(A, soff, slot, tok):
    A(f's_add_u32 m0, s31, {slot * 16 * KB}')
    for q in range(4):
        A(f'buffer_load_dwordx4 v1, s[8:11], {soff} offen offset:{q * 1024} sc1 lds', tok=tok)
    A(f's_add_u32 {soff}, {soff}, {16 * KB}')


def colsum_frag(A, src, soff, stride, ldsaddr, t):
    def load():
        for q in range(8):
            if q * stride < 4096:
                A(f'buffer_load_dword {v(src + q)}, v7, s[8:11], {soff} offen offset:{q * stride} sc1')
            else:
                if (q - 1) * stride < 4096:
                    A(f's_add_u32 s19, {soff}, {q * stride}')
                    q0 = q
                A(f'buffer_load_dword {v(src + q)}, v7, s[8:11], s19 offen offset:{(q - q0) * stride} sc1')

    def fin():
        for q in range(1, 8):
            A(f'v_add_f32 {v(src)}, {v(src)}, {v(src + q)}')
        swap_add(A, src, src + 1)
        A(f'''
        v_cvt_pk_bf16_f32 {v(t)}, {v(src)}, {v(src)}
        v_lshlrev_b32 {v(src + 1)}, 16, {v(t)}
        v_sub_f32 {v(src + 1)}, {v(src)}, {v(src + 1)}
        v_cvt_pk_bf16_f32 {v(t + 1)}, {v(src + 1)}, 0
        v_cmp_eq_u32 vcc, 0, v3
        v_mov_b32 {v(t + 2)}, 0
        v_mov_b32 {v(t + 3)}, 0
        v_cndmask_b32 {v(t)}, 0, {v(t)}, vcc
        v_cndmask_b32 {v(t + 1)}, 0, {v(t + 1)}, vcc
        v_add_u32 {v(src + 2)}, {ldsaddr}, v1
        ''')
        A(f'ds_write_b128 {v(src + 2)}, {v(t, 4)}', tok='xfw')
    return load, fin


def p0(A):
    A(f'''
    s_cmp_ge_u32 s2, 256
    s_cbranch_scc1 L_end
    s_load_dwordx4 s[60:63], s[0:1], 56
    s_load_dwordx2 s[8:9], s[0:1], 72
    s_load_dwordx4 s[32:35], s[0:1], 0
    s_load_dwordx2 s[40:41], s[0:1], 16
    s_load_dwordx4 s[44:47], s[0:1], 32
    s_load_dwordx2 s[52:53], s[0:1], 48
    ''')
    if CFG['diag']:
        A('v_mov_b32 v15, 0')
    A(f'''
    v_lshrrev_b32 v1, 6, v0
    v_and_b32 v0, 63, v0
    v_readfirstlane_b32 {W}, v1
    v_lshlrev_b32 v1, 4, v0
    s_getreg_b32 {XCC}, hwreg(HW_REG_XCC_ID, 0, 4)
    s_mov_b32 s10, {WS_BYTES}
    s_mov_b32 s11, 0x20000
    s_and_b32 s16, s2, 7
    s_lshr_b32 s17, s2, 3
    s_lshl_b32 s16, s16, 1
    s_lshr_b32 s18, s17, 4
    s_add_u32 {RB}, s16, s18
    s_and_b32 {C}, s17, 15
    s_lshl_b32 {RB32}, {RB}, 2
    s_add_u32 {RB32}, {RB32}, {W}
    s_lshl_b32 {RB64}, {RB}, 1
    s_and_b32 s16, {C}, 1
    s_add_u32 {RB64}, {RB64}, s16
    s_lshr_b32 {CB}, {C}, 1
    s_lshr_b32 s16, {W}, 1
    s_and_b32 s17, {W}, 1
    s_lshl_b32 s18, {RB64}, 1
    s_add_u32 s18, s18, s16
    s_lshl_b32 s19, {CB}, 1
    s_add_u32 s19, s19, s17
    s_lshl_b32 {TOFF}, s18, 4
    s_add_u32 {TOFF}, {TOFF}, s19
    s_lshl_b32 {SOFF}, {TOFF}, 8
    s_lshl_b32 {TOFF}, {TOFF}, 11
    s_lshl_b32 {XFA}, s18, 7
    s_lshl_b32 s56, s19, 2
    s_add_u32 {XFA}, {XFA}, s56
    s_add_u32 {XFA}, {XFA}, {XFL}
    s_lshl_b32 s57, s18, 15
    s_lshl_b32 s56, s19, 6
    s_add_u32 s57, s57, s56
    s_lshl_b32 s31, {W}, 12
    s_lshl_b32 s16, s16, 10
    s_lshl_b32 s17, s17, 10
    v_add_u32 v8, s16, v1
    v_xor_b32 v9, 0x400, v8
    v_add_u32 v10, s17, v1
    v_xor_b32 v11, 0x400, v10
    v_and_b32 v2, 31, v0
    v_lshrrev_b32 v3, 5, v0
    v_lshlrev_b32 v12, 3, v2
    v_lshl_add_u32 v4, v3, 11, v12
    v_add_u32 v5, 0x10000, v1
    v_add_u32 v6, 0x20000, v1
    v_mov_b32 v13, 0
    s_mov_b32 {LAY}, 0
    v_lshlrev_b32 v16, 10, v2
    v_lshl_add_u32 v16, v3, 4, v16
    v_lshrrev_b32 v17, 2, v0
    v_and_b32 v18, 3, v0
    v_lshlrev_b32 v18, 4, v18
    v_mul_u32_u24 v19, 3072, v17
    v_add_u32 v19, v19, v18
    v_mul_u32_u24 v20, 3584, v17
    v_add_u32 v20, v20, v18
    v_lshl_add_u32 v21, v17, 10, v18
    s_min_u32 s59, {W}, 2
    s_waitcnt lgkmcnt(0)
    ''')
    stamp(A, True)
    stamp(A)
    A(f'''
    s_cmp_lg_u32 s2, 0
    s_cbranch_scc1 L_noclr0
    v_mov_b32 v24, 0
    v_mov_b32 v25, 0
    v_mov_b32 v26, 0
    v_mov_b32 v27, 0
    s_mul_i32 s16, {W}, {5 * KB}
    s_add_u32 s16, s16, {FL}
    buffer_store_dwordx4 v[24:27], v1, s[8:11], s16 offen sc1
    buffer_store_dwordx4 v[24:27], v1, s[8:11], s16 offen offset:1024 sc1
    buffer_store_dwordx4 v[24:27], v1, s[8:11], s16 offen offset:2048 sc1
    buffer_store_dwordx4 v[24:27], v1, s[8:11], s16 offen offset:3072 sc1
    s_add_u32 s16, s16, 4096
    ''')
    A('buffer_store_dwordx4 v[24:27], v1, s[8:11], s16 offen sc1', tok='clr')
    A.label('L_noclr0')
    A(f'''
    s_mov_b64 s[36:37], s[34:35]
    s_mov_b32 s34, {2048 * KB}
    s_mov_b32 s35, 0x20000
    s_mov_b32 s38, {1536 * KB}
    s_mov_b32 s39, 0x20000
    s_mov_b32 s42, {512 * KB}
    s_mov_b32 s43, 0x20000
    s_mov_b64 s[48:49], s[46:47]
    s_mov_b32 s46, {1792 * KB}
    s_mov_b32 s47, 0x20000
    s_mov_b32 s50, {1792 * KB}
    s_mov_b32 s51, 0x20000
    s_mov_b32 s54, {1792 * KB}
    s_mov_b32 s55, 0x20000
    s_mov_b64 s[12:13], s[62:63]
    s_mov_b32 s14, 256
    s_mov_b32 s15, 0x20000
    buffer_load_dwordx4 {v(RES, 4)}, v16, s[32:35], s57 offen
    buffer_load_dwordx4 {v(RES + 4, 4)}, v16, s[32:35], s57 offen offset:32
    s_mul_i32 s56, {W}, {9 * KB}
    s_add_u32 s56, s56, {L_RED}
    ''')
    A(f'''
    s_mul_i32 s16, {RB}, {32 * 3072}
    s_lshl_b32 s17, s59, 10
    s_add_u32 s16, s16, s17
    s_lshl_b32 s17, {C}, 6
    s_add_u32 s16, s16, s17
    s_mov_b32 m0, s56
    ''')
    A('buffer_load_dwordx4 v19, s[36:39], s16 offen lds')
    A(f's_add_u32 s16, s16, {16 * 3072}\ns_add_u32 m0, s56, 1024')
    A('buffer_load_dwordx4 v19, s[36:39], s16 offen lds', tok='pa')
    A('s_cmp_lg_u32 s2, 0\ns_cbranch_scc1 L_noclr')
    A.wait('clr')
    A(f'''
    s_lshl_b32 s16, {W}, 2
    v_mov_b32 v14, 1
    s_mov_b64 exec, 1
    buffer_store_dword v14, v13, s[12:15], s16 offen sc1
    s_mov_b64 exec, -1
    ''')
    A.label('L_noclr')
    A(f'''
    s_mul_i32 s16, {RB}, {32 * 3584}
    s_mul_i32 s17, {C}, 224
    s_add_u32 s16, s16, s17
    s_lshl_b32 s17, {W}, 6
    s_add_u32 s16, s16, s17
    ''')
    for u in range(2):
        A(f's_add_u32 m0, s56, {(2 + 2 * u) * KB}')
        A('buffer_load_dwordx4 v20, s[44:47], s16 offen lds')
        A(f's_add_u32 m0, s56, {(3 + 2 * u) * KB}')
        A('buffer_load_dwordx4 v20, s[48:51], s16 offen lds')
        if u == 0:
            A(f's_add_u32 s16, s16, {16 * 3584}')
    A(f'''
    s_lshl_b32 s16, {RB64}, 14
    s_lshl_b32 s17, {CB}, 7
    s_add_u32 s16, s16, s17
    s_and_b32 s18, {W}, 1
    s_lshl_b32 s18, s18, 6
    s_add_u32 s16, s16, s18
    s_add_u32 m0, s56, {6 * KB}
    ''')
    A('buffer_load_dwordx4 v21, s[40:43], s16 offen lds')
    A(f'''
    s_and_b32 s16, {C}, 1
    s_lshl_b32 s16, s16, 2
    s_add_u32 s16, s16, {W}
    s_min_u32 s64, s16, 6
    s_mul_i32 s16, {RB}, 7
    s_add_u32 s16, s16, s64
    s_lshl_b32 s16, s16, 14
    s_add_u32 s16, s16, s17
    s_add_u32 m0, s56, {7 * KB}
    ''')
    A('buffer_load_dwordx4 v21, s[52:55], s16 offen lds')
    A(f's_add_u32 s16, s16, 64\ns_add_u32 m0, s56, {8 * KB}')
    A('buffer_load_dwordx4 v21, s[52:55], s16 offen lds', tok='pb')
    A(f'''
    v_bfe_u32 v17, v0, 2, 2
    v_lshl_add_u32 v17, v3, 2, v17
    v_lshlrev_b32 v17, 6, v17
    v_and_b32 v18, 3, v0
    v_lshl_add_u32 v17, v18, 3, v17
    v_add_u32 v17, s56, v17
    v_bfe_u32 v18, v0, 4, 1
    v_lshl_add_u32 v22, v18, 5, v17
    v_lshl_add_u32 v23, v18, 10, v17
    s_mov_b32 s65, 0x3f803f80
    s_mov_b32 s19, 0xffff0000
    ''')
    for f in range(2):
        r = RES + 4 * f
        A(f'v_permlane32_swap_b32 {v(r)}, {v(r + 2)}\nv_permlane32_swap_b32 {v(r + 1)}, {v(r + 3)}')
    stamp(A)
    A(f's_add_u32 s16, {TOFF}, {X[0]}\ns_add_u32 s17, {SOFF}, {ST[0]}')
    A(f'buffer_store_dwordx4 {v(RES, 4)}, v1, s[8:11], s16 offen sc1')
    A(f'buffer_store_dwordx4 {v(RES + 4, 4)}, v1, s[8:11], s16 offen offset:1024 sc1')
    for d in range(8):
        A(f'v_lshlrev_b32 {v(32 + 2 * d)}, 16, {v(RES + d)}\nv_and_b32 {v(33 + 2 * d)}, s19, {v(RES + d)}')
    stats_part(A, 32, 28, 's17', 'sc1')

    def tr(dst, base, o):
        A(f'ds_read_b64_tr_b16 {v(dst, 2)}, {base} offset:{o}\nds_read_b64_tr_b16 {v(dst + 2, 2)}, {base} offset:{o + 512}')

    def csum(acc, regs):
        A(f'v_mov_b32 {v(acc)}, 0\nv_mov_b32 {v(acc + 1)}, 0')
        for i, r in enumerate(regs):
            A(f'v_dot2_f32_bf16 {v(acc + (i & 1))}, {v(r)}, s65, {v(acc + (i & 1))}')
        A(f'v_add_f32 {v(acc)}, {v(acc)}, {v(acc + 1)}')
        swap_add(A, acc, acc + 1)
    A.wait('pa')
    tr(32, 'v22', 0)
    tr(36, 'v22', 1024)
    A(f'''
    s_lshl_b32 s16, {RB}, 2
    s_add_u32 s16, s16, s59
    s_sub_u32 s16, s16, 1
    s_lshl_b32 s17, {RB}, 1
    s_add_u32 s17, s17, 64
    s_cmp_eq_u32 s59, 0
    s_cselect_b32 s16, s17, s16
    s_cselect_b32 s18, 1, 2
    s_lshl_b32 s18, s18, 10
    s_mul_i32 s17, {C}, 96
    s_add_u32 s16, s16, s17
    s_lshl_b32 s16, s16, 10
    s_add_u32 s16, s16, {WQKV}
    s_add_u32 s18, s18, s16
    buffer_store_dwordx4 v[32:35], v1, s[8:11], s16 offen sc1
    buffer_store_dwordx4 v[36:39], v1, s[8:11], s18 offen sc1
    ''')
    csum(40, range(32, 40))
    A(f'''
    s_lshl_b32 s16, {C}, 4
    s_add_u32 s16, s16, {RB}
    s_mul_i32 s17, s16, 384
    s_lshl_b32 s18, s59, 7
    s_add_u32 s17, s17, s18
    s_add_u32 s17, s17, {CSQ}
    v_lshlrev_b32 v24, 2, v2
    ''')
    A('buffer_store_dword v40, v24, s[8:11], s17 offen sc1', tok='pas')
    stamp(A)
    A('v_and_b32 v7, 3, v0\nv_lshlrev_b32 v7, 2, v7')
    poll(A, 'v7', '0', '1', srd='s[12:15]')
    A.wait('pas')
    stamp(A)
    A(f'''
    s_lshl_b32 s16, {C}, 6
    s_lshl_b32 s17, {W}, 4
    s_add_u32 s16, s16, s17
    s_add_u32 s16, s16, {RB}
    s_lshl_b32 s16, s16, 2
    s_add_u32 s33, s16, {CFL}
    s_or_b32 s17, {XCC}, 16
    ''')
    flag(A, 's33', '1', 'sc1')
    flag(A, XFA, 's17', 'sc1')
    A.wait('pb')
    for u in range(2):
        for t in range(2):
            tr(32 + 8 * t + 4 * u, 'v23', (2 + 2 * u) * KB + 32 * t)
    tr(48, 'v22', 6 * KB)
    tr(52, 'v22', 7 * KB)
    tr(56, 'v22', 8 * KB)
    A(f'''
    s_lshl_b32 s16, {C}, 4
    s_add_u32 s16, s16, {RB}
    s_lshl_b32 s16, s16, 10
    s_lshl_b32 s17, {W}, 8
    s_add_u32 s16, s16, s17
    s_add_u32 s34, s16, {CSG}
    ''')
    for t in range(2):
        A(f'''
        s_lshl_b32 s16, {W}, 1
        s_add_u32 s16, s16, {t}
        s_mul_i32 s17, {RB}, 6
        s_add_u32 s17, s17, s16
        s_lshl_b32 s18, s16, 5
        s_lshl_b32 s19, {RB}, 1
        s_add_u32 s18, s18, s19
        s_cmp_lt_u32 s16, 3
        s_cselect_b32 s17, s17, s18
        s_cselect_b32 s18, 3, 1
        s_lshl_b32 s18, s18, 10
        s_mul_i32 s19, {C}, 224
        s_add_u32 s17, s17, s19
        s_lshl_b32 s17, s17, 10
        s_add_u32 s17, s17, {WGU}
        s_add_u32 s18, s18, s17
        ''')
        if t == 1:
            A(f's_cmp_eq_u32 {W}, 3\ns_cbranch_scc1 L_notile')
        A(f'buffer_store_dwordx4 {v(32 + 8 * t, 4)}, v1, s[8:11], s17 offen sc1')
        A(f'buffer_store_dwordx4 {v(36 + 8 * t, 4)}, v1, s[8:11], s18 offen sc1')
        csum(60 + 2 * t, range(32 + 8 * t, 40 + 8 * t))
        A(f'buffer_store_dword {v(60 + 2 * t)}, v24, s[8:11], s34 offen offset:{128 * t} sc1')
    A.label('L_notile')
    A(f'''
    s_lshl_b32 s16, {CB}, 5
    s_add_u32 s16, s16, {RB64}
    s_lshl_b32 s16, s16, 1
    s_and_b32 s17, {W}, 1
    s_add_u32 s16, s16, s17
    s_lshl_b32 s16, s16, 10
    s_add_u32 s16, s16, {WO}
    buffer_store_dwordx4 v[48:51], v1, s[8:11], s16 offen sc1
    s_mul_i32 s16, {CB}, 112
    s_lshr_b32 s17, {RB}, 2
    s_mul_i32 s17, s17, 28
    s_add_u32 s16, s16, s17
    s_lshl_b32 s17, s64, 2
    s_add_u32 s16, s16, s17
    s_and_b32 s17, {RB}, 3
    s_add_u32 s16, s16, s17
    s_lshl_b32 s16, s16, 11
    s_add_u32 s16, s16, {WD}
    buffer_store_dwordx4 v[52:55], v1, s[8:11], s16 offen sc1
    ''')
    A('buffer_store_dwordx4 v[56:59], v1, s[8:11], s16 offen offset:1024 sc1', tok='pbs')
    stamp(A)
    A(f's_lshl_b32 s16, {C}, 8\ns_add_u32 s16, s16, {CFL}\nv_lshlrev_b32 v7, 2, v0')
    poll(A, 'v7', 's16', '1')
    stamp(A)
    A.wait('pbs')
    flag(A, 's33', '2', 'sc1')
    A(f'''
    s_mul_i32 s16, {C}, {16 * 384}
    s_lshl_b32 s17, s59, 7
    s_add_u32 s16, s16, s17
    s_add_u32 s16, s16, {CSQ}
    v_mul_u32_u24 v7, {8 * 384}, v3
    v_add_u32 v7, v7, v24
    s_add_u32 s17, s59, 2
    s_cmp_ge_u32 s17, 3
    s_cselect_b32 s18, 3, 0
    s_sub_u32 s17, s17, s18
    s_lshl_b32 s17, s17, 10
    s_add_u32 s17, s17, {L_XQ}
    ''')
    ld, fin = colsum_frag(A, 32, 's16', 384, 's17', 40)
    ld()
    wqkv_dma_start(A)
    fin()
    A(f's_lshl_b32 s16, {RB32}, 7\ns_add_u32 s16, s16, {XFL}\nv_and_b32 v7, 15, v0\nv_lshlrev_b32 v7, 2, v7')
    poll(A, 'v7', 's16', '16')
    A(f'''
    v_and_b32 v14, 15, v14
    v_cmp_ne_u32 vcc, {XCC}, v14
    ''')
    stamp(A)
    stamp_flush(A, 0)
    if CFG['force_safe']:
        A('s_branch L_safe')
    else:
        A('s_cbranch_vccnz L_safe')


def wqkv_dma_start(A):
    A(f's_mul_i32 s32, {C}, {96 * KB}\ns_add_u32 s32, s32, s31\ns_add_u32 s32, s32, {WQKV}')
    for j in range(4):
        dma_chunk(A, 's32', j, f'q{j}')


def k1(A, m, sc):
    KT, VT, QT = 16, 32, 48
    WB, STR, MEAN, RSTD, T, XF = 88, 112, 128, 129, 130, 132
    P = 88
    D = CFG['xdepth']
    A(f'''
    s_lshl_b32 s34, {LAY}, 22
    s_lshl_b32 s16, {RB32}, 15
    s_add_u32 s34, s34, s16
    s_add_u32 s34, s34, {XB}
    s_lshl_b32 s35, {LAY}, 19
    s_lshl_b32 s16, {RB32}, 12
    s_add_u32 s35, s35, s16
    s_add_u32 s35, s35, {SB}
    s_lshl_b32 s36, {CB}, 16
    s_lshl_b32 s16, {W}, 14
    s_add_u32 s36, s36, s16
    s_add_u32 s36, s36, {WO}
    ''')

    def xload(kg):
        A(f'buffer_load_dwordx4 {a(4 * kg, 4)}, v1, s[8:11], s34 offen offset:{(kg & 3) * 1024} sc1')
        if kg & 3 == 3:
            A('s_add_u32 s34, s34, 4096')

    def woload(i):
        hh, c = i >> 1, i & 1
        A(f'buffer_load_dwordx4 {a(128 + 8 * hh + 4 * c, 4)}, {("v10", "v11")[c]}, s[8:11], s36 offen '
          f'offset:{(hh & 1) * 2048} sc1')
        if i & 3 == 3:
            A('s_add_u32 s36, s36, 4096')
    for kg in range(D):
        xload(kg)
        if kg == 1:
            stats_load(A, STR, 's35')
    NB, LAG = 6, 2
    buf = lambda p: v(WB + 4 * (p % NB), 4)
    stat = stats_combine(STR, MEAN, RSTD, T, XF)
    stat += [f's_lshl_b32 s16, {W}, 7', f's_add_u32 s16, s16, {L_RS}', f'v_lshl_add_u32 v7, v2, 2, s16',
             f'ds_write_b32 v7, {v(RSTD)}', f'v_lshl_add_u32 v7, v3, 4, s16']
    stat += [f'ds_read_b128 {v(STR + 4 * j, 4)}, v7 offset:{32 * j}' for j in range(4)]
    groups = []
    for p in range(66 + LAG):
        g = []
        if p % 16 == 0 and p < 64:
            j = p // 16
            g.append(lambda j=j: (A.wait(f'q{j}', 'xfw'), A('s_barrier')))
        if p < 66:
            g.append(lds_rd(buf(p), p * KB if p < 64 else L_XQ + (p - 64) * KB))
        if p >= LAG:
            q = p - LAG
            kg, t = q >> 1, q & 1
            xf = a(4 * kg, 4) if kg < 32 else v(XF, 4)
            acc = v((KT, VT)[t], 16)
            g.append(f'{MF} {acc}, {xf}, {buf(q)}, {"0" if kg == 0 else acc}')
            if t == 1 and kg + D < 32:
                g.append(lambda kg=kg: xload(kg + D))
            if t == 1 and kg + D in (33, 36):
                g.append(lambda j=4 + (kg + D - 33) // 3: dma_chunk(A, 's32', j, f'q{j}'))
        groups.append(g)
    emit_with_fill(A, groups[:2 + LAG], [], 0)
    stamp(A)
    emit_with_fill(A, groups[2 + LAG:20], [], 0)
    emit_with_fill(A, groups[20:62], stat, 2)
    emit_with_fill(A, groups[62:], [], 0)
    stamp(A)
    A(f's_mov_b32 s37, {f2u(1e-6)}\ns_mov_b32 s38, {f2u(LOG2E)}')
    A(f'v_mul_f32 {v(MEAN)}, s38, {v(RSTD)}')
    A(f'''
    v_bfe_u32 v7, v0, 4, 1
    v_lshlrev_b32 v136, 8, v7
    v_lshlrev_b32 v137, 4, v7
    v_bfe_u32 v7, v0, 2, 1
    v_lshlrev_b32 v138, 3, v7
    v_bfe_u32 v7, v0, 3, 1
    v_lshl_add_u32 v138, v7, 2, v138
    v_and_b32 v7, 3, v0
    v_add_u32 v138, v138, v7
    s_mul_i32 s16, {W}, 2176
    s_add_u32 s16, s16, {L_RED}
    v_add_u32 v136, v136, v138
    v_lshl_add_u32 v136, v3, 6, v136
    v_lshl_add_u32 v136, v136, 2, s16
    v_add_u32 v137, v137, v138
    v_lshl_add_u32 v137, v137, 2, s16
    v_and_b32 v7, 16, v0
    v_cmp_eq_u32 vcc, 0, v7
    ''')
    for i in range(16):
        A(f'v_mul_f32 {v(KT + i)}, {v(KT + i)}, {v(STR + i)}')
    for i in range(0, 16, 2):
        A(f'''
        v_mul_f32 {v(T)}, s38, {v(KT + i)}
        v_mul_f32 {v(T + 1)}, s38, {v(KT + i + 1)}
        v_exp_f32_e64 {v(T)}, {v(T)} clamp
        v_exp_f32_e64 {v(T + 1)}, {v(T + 1)} clamp
        v_max_f32 {v(KT + i)}, 0, {v(KT + i)}
        v_max_f32 {v(KT + i + 1)}, 0, {v(KT + i + 1)}
        v_add_f32 {v(T)}, s37, {v(T)}
        v_add_f32 {v(T + 1)}, s37, {v(T + 1)}
        v_mul_f32 {v(VT + i)}, {v(VT + i)}, {v(STR + i)}
        v_mul_f32 {v(VT + i + 1)}, {v(VT + i + 1)}, {v(STR + i + 1)}
        v_add_f32 {v(KT + i)}, {v(KT + i)}, {v(T)}
        v_add_f32 {v(KT + i + 1)}, {v(KT + i + 1)}, {v(T + 1)}
        v_cvt_pk_bf16_f32 {v(P + 16 + i // 2)}, {v(VT + i)}, {v(VT + i + 1)}
        v_cvt_pk_bf16_f32 {v(P + 8 + i // 2)}, {v(KT + i)}, {v(KT + i + 1)}
        ''')
    D2 = VT
    A(f'{MF} {v(D2, 16)}, {v(P + 16, 4)}, {v(P + 8, 4)}, 0')
    A(f'{MF} {v(D2, 16)}, {v(P + 20, 4)}, {v(P + 12, 4)}, {v(D2, 16)}')
    for i in range(2, 16, 2):
        A(f'v_add_f32 {v(KT)}, {v(KT)}, {v(KT + i)}\nv_add_f32 {v(KT + 1)}, {v(KT + 1)}, {v(KT + i + 1)}')
    A(f'v_add_f32 {v(KT)}, {v(KT)}, {v(KT + 1)}')
    swap_add(A, KT, T)
    A(f'ds_write_b32 v137, {v(KT)} offset:2048')
    for i in range(8):
        A(f'v_cndmask_b32 {v(KT + 1 + i)}, {v(D2 + 8 + i)}, {v(D2 + i)}, vcc')
        A(f'ds_write_b32 v136, {v(KT + 1 + i)} offset:{(8 * (i >> 2) + (i & 3)) * 64}', tok='kvw')
    A(f'''
    s_lshl_b32 s16, {W}, 9
    v_lshl_add_u32 v136, v0, 3, s16
    v_add_u32 v137, {L_RED}, v136
    s_lshl_b32 s16, {W}, 5
    s_add_u32 s16, s16, 2048
    v_and_b32 v7, 7, v0
    v_lshl_add_u32 v138, v7, 2, s16
    v_add_u32 v139, {L_RED}, v138
    s_mul_i32 s39, {LAY}, {KVS}
    s_mul_i32 s16, {C}, {16 * 2176}
    s_add_u32 s39, s39, s16
    s_add_u32 s39, s39, {KVP}
    s_mul_i32 s16, {RB}, 2176
    s_add_u32 s40, s39, s16
    ''')
    A.wait('kvw', 'q4', 'q5')
    A('s_barrier')
    for w in range(4):
        A(f'ds_read_b64 {v(KT + 2 * w, 2)}, v137 offset:{w * 2176}')
        A(f'ds_read_b32 {v(KT + 8 + w)}, v139 offset:{w * 2176}')
    rq = lambda p: lds_rd(buf(p), (64 + p) * KB if p < 32 else L_XQ + 2 * KB)
    A(rq(0))
    A(rq(1))
    for w in range(1, 4):
        A(f'v_add_f32 {v(KT)}, {v(KT)}, {v(KT + 2 * w)}\nv_add_f32 {v(KT + 1)}, {v(KT + 1)}, {v(KT + 2 * w + 1)}\n'
          f'v_add_f32 {v(KT + 8)}, {v(KT + 8)}, {v(KT + 8 + w)}')
    A(f'buffer_store_dwordx2 {v(KT, 2)}, v136, s[8:11], s40 offen sc1')
    A(f'buffer_store_dword {v(KT + 8)}, v138, s[8:11], s40 offen sc1', tok='kvs')
    stamp(A)
    A(f's_add_u32 s41, {LAY}, 3')
    for p in range(33):
        if p + 2 < 33:
            A(rq(p + 2))
        xf = a(4 * p, 4) if p < 32 else v(XF, 4)
        A(f'{MF} {v(QT, 16)}, {buf(p)}, {xf}, {"0" if p == 0 else v(QT, 16)}')
        if p == CFG.get('kvflag_at', 22):
            A.wait('kvs')
            flag(A, 's33', 's41', 'sc1')
    stamp(A)
    A(f's_and_b32 s16, {C}, 14\ns_lshl_b32 s16, s16, 8\ns_add_u32 s42, s16, {CFL}\nv_lshlrev_b32 v139, 3, v0')
    A(f's_cmp_lg_u32 {LAY}, 0\ns_cbranch_scc1 {m}_nopk')
    poll(A, 'v139', 's42', '2', width=2)
    A.label(m + '_nopk')
    fill = [lambda i=i: woload(i) for i in range(16)]
    qe = []
    for i in range(0, 16, 2):
        qe.append([f'''
        v_mul_f32 {v(T)}, {v(MEAN)}, {v(QT + i)}
        v_mul_f32 {v(T + 1)}, {v(MEAN)}, {v(QT + i + 1)}
        v_exp_f32_e64 {v(T)}, {v(T)} clamp
        v_exp_f32_e64 {v(T + 1)}, {v(T + 1)} clamp
        v_fma_f32 {v(QT + i)}, {v(QT + i)}, {v(RSTD)}, s37
        v_fma_f32 {v(QT + i + 1)}, {v(QT + i + 1)}, {v(RSTD)}, s37
        v_max_f32 {v(QT + i)}, s37, {v(QT + i)}
        v_max_f32 {v(QT + i + 1)}, s37, {v(QT + i + 1)}
        v_add_f32 {v(QT + i)}, {v(QT + i)}, {v(T)}
        v_add_f32 {v(QT + i + 1)}, {v(QT + i + 1)}, {v(T + 1)}
        v_cvt_pk_bf16_f32 {v(P + i // 2)}, {v(QT + i)}, {v(QT + i + 1)}
        '''])
    emit_with_fill(A, qe, fill, 2)
    stamp(A)
    A(f'''
    s_lshl_b32 s16, {C}, 8
    s_lshl_b32 s17, {W}, 6
    s_add_u32 s16, s16, s17
    s_add_u32 s16, s16, {CFL}
    v_and_b32 v7, 15, v0
    v_lshlrev_b32 v7, 2, v7
    v_mul_u32_u24 v136, 2176, v3
    v_lshl_add_u32 v136, v2, 4, v136
    v_lshrrev_b32 v137, 2, v0
    v_mul_u32_u24 v137, 2176, v137
    v_and_b32 v138, 3, v0
    v_lshl_add_u32 v137, v138, 3, v137
    s_lshl_b32 s17, {W}, 9
    s_add_u32 s43, s39, s17
    s_lshl_b32 s17, {W}, 5
    s_add_u32 s44, s39, s17
    ''')
    poll(A, 'v7', 's16', 's41')
    stamp(A)
    for i in range(8):
        A(f'buffer_load_dwordx4 {v(16 + 4 * i, 4)}, v136, s[8:11], s43 offen sc1')
        if i < 7:
            A(f's_add_u32 s43, s43, {2 * 2176}')
    A(f'buffer_load_dwordx2 v[48:49], v137, s[8:11], s44 offen offset:2048 sc1')
    A('s_barrier')
    A(f's_mul_i32 s32, {C}, {224 * KB}\ns_add_u32 s32, s32, s31\ns_add_u32 s32, s32, {WGU}')
    for j in range(CFG.get('g_early', 2)):
        dma_chunk(A, 's32', j, f'g{j}')
    A(f'''
    s_lshr_b32 s16, {W}, 1
    s_lshl_b32 s17, s16, 6
    s_lshl_b32 s18, {W}, 9
    s_add_u32 s17, s17, s18
    s_add_u32 s17, s17, {L_KV}
    v_lshl_add_u32 v136, v2, 4, s17
    s_mul_i32 s16, s16, 1088
    s_and_b32 s17, {W}, 1
    s_lshl_b32 s17, s17, 5
    s_add_u32 s16, s16, s17
    s_add_u32 s16, s16, {L_KV + 1024}
    v_lshl_add_u32 v137, v138, 3, s16
    v_min_u32 v138, 16, v2
    v_lshlrev_b32 v138, 6, v138
    v_lshl_add_u32 v138, v3, 5, v138
    v_add_u32 v138, {L_KV}, v138
    ''')
    for i in range(1, 8):
        for j in range(4):
            A(f'v_add_f32 {v(16 + j)}, {v(16 + j)}, {v(16 + 4 * i + j)}')
    for j in range(4):
        A(f'v_mov_b32 {v(20 + j)}, {v(16 + j)}')
    for j in range(4):
        A(f'v_permlane32_swap_b32 {v(20 + j)}, {v(16 + j)}')
    for j in range(4):
        A(f'v_add_f32 {v(16 + j)}, {v(20 + j)}, {v(16 + j)}')
    A('ds_write_b128 v136, v[16:19]')
    for ror in (4, 8):
        for j in range(2):
            A(f'v_add_f32_dpp {v(50 + j)}, {v(48 + j)}, {v(48 + j)} row_ror:{ror} row_mask:0xf bank_mask:0xf')
        A('v_mov_b32 v48, v50\nv_mov_b32 v49, v51')
    for sw in ('16', '32'):
        A(f'v_permlane{sw}_swap_b32 v50, v48\nv_permlane{sw}_swap_b32 v51, v49\n'
          f'v_add_f32 v48, v50, v48\nv_add_f32 v49, v51, v49')
        if sw == '16':
            A('v_mov_b32 v50, v48\nv_mov_b32 v51, v49')
    A('ds_write_b64 v137, v[48:49]', tok='kvt')
    A(f'''
    s_lshr_b32 s16, {RB32}, 1
    s_lshl_b32 s17, s16, 7
    s_lshl_b32 s16, s16, 4
    s_add_u32 s16, s16, {C}
    s_lshl_b32 s16, s16, 12
    s_and_b32 s18, {W}, 1
    s_lshl_b32 s19, s18, 10
    s_add_u32 s16, s16, s19
    s_lshl_b32 s19, {LAY}, 21
    s_add_u32 s16, s16, s19
    s_add_u32 s45, s16, {OB}
    s_lshl_b32 s19, {C}, 1
    s_add_u32 s18, s18, s19
    s_lshl_b32 s18, s18, 2
    s_add_u32 s47, s17, s18
    s_add_u32 s46, s47, {OFL}
    s_add_u32 s47, s47, {HFL}
    ''')
    A.wait('kvt')
    A('s_barrier')
    for f in range(2):
        A(f'ds_read_b128 {v(16 + 8 * f, 4)}, v138 offset:{f * 1088}\n'
          f'ds_read_b128 {v(20 + 8 * f, 4)}, v138 offset:{f * 1088 + 16}')
    for f in range(2):
        k = 16 + 8 * f
        for d in range(4):
            A(f'v_cvt_pk_bf16_f32 {v(k + d)}, {v(k + 2 * d)}, {v(k + 2 * d + 1)}')
        A(f'{MF} {v(32 + 16 * f, 16)}, {v(k, 4)}, {v(P + 4 * f, 4)}, 0')
    for f in range(2):
        d = 32 + 16 * f
        A(f'v_add_f32 {v(T)}, s37, {v(d + 8)}\nv_rcp_f32 {v(T)}, {v(T)}')
        for i in range(8):
            A(f'v_mul_f32 {v(d + i)}, {v(d + i)}, {v(T)}')
        for i in range(4):
            A(f'v_cvt_pk_bf16_f32 {v(P + 8 + 4 * f + i)}, {v(d + 2 * i)}, {v(d + 2 * i + 1)}')
        A(f'buffer_store_dwordx4 {v(P + 8 + 4 * f, 4)}, v1, s[8:11], s45 offen offset:{f * 2048} {sc.o}', tok='os')
    A(f's_add_u32 s16, {LAY}, 1')
    stamp(A)
    A.wait('os')
    flag(A, 's46', 's16', sc.f)
    stamp(A)
    A(f's_cmp_lg_u32 {LAY}, 0\ns_cbranch_scc1 {m}_nocs')
    A(f'''
    s_lshl_b32 s16, {C}, 14
    s_lshl_b32 s17, {W}, 8
    s_add_u32 s16, s16, s17
    s_add_u32 s16, s16, {CSG}
    s_add_u32 s17, s16, 128
    v_lshlrev_b32 v7, 2, v2
    v_lshl_add_u32 v7, v3, 13, v7
    s_lshl_b32 s48, {W}, 11
    s_add_u32 s48, s48, {L_XG}
    s_add_u32 s49, s48, 1024
    ''')
    l0, f0 = colsum_frag(A, 16, 's16', 1024, 's48', 32)
    l1, f1 = colsum_frag(A, 24, 's17', 1024, 's49', 36)
    l0()
    l1()
    f0()
    A(f's_cmp_eq_u32 {W}, 3\ns_cbranch_scc1 {m}_nocs')
    f1()
    A.label(m + '_nocs')


def reduce_epilogue(A, m, mid=None):
    T = 88
    for sg in range(1, 4):
        A(f'''
        s_xor_b32 s16, {W}, {sg}
        s_mul_i32 s16, s16, {3 * 4096}
        s_add_u32 s16, s16, {L_RED + (sg - 1) * 4096}
        v_add_u32 v7, s16, v1
        ''')
        for jj in range(4):
            A(f'ds_write_b128 v7, {v(ACC + 16 * sg + 4 * jj, 4)} offset:{jj * 1024}', tok='red')
    A(f's_mul_i32 s16, {W}, {3 * 4096}\ns_add_u32 s16, s16, {L_RED}\nv_add_u32 v7, s16, v1\ns_mov_b32 s17, 0xffff0000')
    for d in range(8):
        A(f'''
        v_lshlrev_b32 {v(T)}, 16, {v(RES + d)}
        v_and_b32 {v(T + 1)}, s17, {v(RES + d)}
        v_add_f32 {v(ACC + 2 * d)}, {v(ACC + 2 * d)}, {v(T)}
        v_add_f32 {v(ACC + 2 * d + 1)}, {v(ACC + 2 * d + 1)}, {v(T + 1)}
        ''')
    A.wait('red')
    A('s_barrier')
    for jj in range(4):
        for sg in range(1, 4):
            A(f'ds_read_b128 {v(ACC + 16 * sg + 4 * jj, 4)}, v7 offset:{(sg - 1) * 4096 + jj * 1024}')
    if mid:
        mid()
    for jj in range(4):
        for sg in range(1, 4):
            for i in range(4 * jj, 4 * jj + 4):
                A(f'v_add_f32 {v(ACC + i)}, {v(ACC + i)}, {v(ACC + 16 * sg + i)}')
        for d in range(2 * jj, 2 * jj + 2):
            A(f'v_cvt_pk_bf16_f32 {v(RES + d)}, {v(ACC + 2 * d)}, {v(ACC + 2 * d + 1)}')


def publish_x(A, j_off, sc):
    A(f'''
    s_lshl_b32 s16, {LAY}, 22
    s_add_u32 s16, s16, {TOFF}
    s_add_u32 s16, s16, {XB + j_off * 2048 * KB}
    s_lshl_b32 s17, {LAY}, 19
    s_add_u32 s17, s17, {SOFF}
    s_add_u32 s17, s17, {SB + j_off * 256 * KB}
    buffer_store_dwordx4 {v(RES, 4)}, v1, s[8:11], s16 offen {sc.x}
    buffer_store_dwordx4 {v(RES + 4, 4)}, v1, s[8:11], s16 offen offset:1024 {sc.x}
    ''')
    stats_part(A, ACC, 88, 's17', sc.x, tok='xs')
    A(f's_lshl_b32 s50, {LAY}, 5\ns_add_u32 s50, s50, {16 * (j_off + 1)}')
    stamp(A)
    A.wait('xs')
    flag(A, XFA, 's50', sc.f)


def wait_x(A):
    A(f's_lshl_b32 s16, {RB32}, 7\ns_add_u32 s16, s16, {XFL}\nv_and_b32 v7, 15, v0\nv_lshlrev_b32 v7, 2, v7')
    poll(A, 'v7', 's16', 's50')


def k2(A, m, sc):
    A(f'''
    s_lshl_b32 s16, {RB64}, 7
    s_lshl_b32 s17, {W}, 5
    s_add_u32 s51, s16, s17
    s_add_u32 s16, s51, {OFL}
    s_add_u32 s51, s51, {HFL}
    v_and_b32 v7, 7, v0
    v_lshlrev_b32 v139, 2, v7
    s_lshl_b32 s34, {RB64}, 16
    s_lshl_b32 s17, {W}, 14
    s_add_u32 s34, s34, s17
    s_lshl_b32 s17, {LAY}, 21
    s_add_u32 s34, s34, s17
    s_add_u32 s34, s34, {OB}
    s_add_u32 s17, {LAY}, 1
    ''')
    poll(A, 'v139', 's16', 's17')
    stamp(A)
    for hh in range(8):
        for r in range(2):
            A(f'buffer_load_dwordx4 {a(8 * hh + 4 * r, 4)}, {("v8", "v9")[r]}, s[8:11], s34 offen '
              f'offset:{(hh & 1) * 2048} sc1')
        if hh & 1:
            A('s_add_u32 s34, s34, 4096')
    ge = CFG.get('g_early', 2)
    for hh in range(8):
        for r in range(2):
            for c in range(2):
                t = v(ACC + 16 * (2 * r + c), 16)
                A(f'{MF} {t}, {a(128 + 8 * hh + 4 * c, 4)}, {a(8 * hh + 4 * r, 4)}, {"0" if hh == 0 else t}')
        if hh == 0:
            stamp(A)
        if hh >= 8 - (6 - ge):
            j = ge + hh - (8 - (6 - ge))
            dma_chunk(A, 's32', j, f'g{j}')
    stamp(A)
    reduce_epilogue(A, m)
    publish_x(A, 1, sc)
    stamp(A)


def wd_reg(i):
    return a(128 + 4 * i, 4) if i < 32 else v(160 + 4 * (i - 32), 4)


def wdload(A, i):
    st, c = i >> 1, i & 1
    A(f'buffer_load_dwordx4 {wd_reg(i)}, {("v10", "v11")[c]}, s[8:11], s36 offen offset:{(st & 1) * 2048} sc1')
    if i & 3 == 3:
        A('s_add_u32 s36, s36, 4096')


def k3(A, m, sc):
    WB, STR, MEAN, RSTD, T, XF, E = 88, 112, 128, 129, 130, 132, 140
    D = CFG['xdepth']
    A(f'''
    s_lshl_b32 s34, {LAY}, 22
    s_lshl_b32 s16, {RB32}, 15
    s_add_u32 s34, s34, s16
    s_add_u32 s34, s34, {X[1]}
    s_lshl_b32 s35, {LAY}, 19
    s_lshl_b32 s16, {RB32}, 12
    s_add_u32 s35, s35, s16
    s_add_u32 s35, s35, {ST[1]}
    s_mul_i32 s36, {CB}, {224 * KB}
    s_mul_i32 s16, {W}, {56 * KB}
    s_add_u32 s36, s36, s16
    s_add_u32 s36, s36, {WD}
    s_lshr_b32 s16, {RB32}, 1
    s_mul_i32 s16, s16, 112
    s_lshr_b32 s17, {C}, 2
    s_mul_i32 s17, s17, 28
    s_add_u32 s16, s16, s17
    s_and_b32 s17, {C}, 3
    s_add_u32 s16, s16, s17
    s_lshl_b32 s16, s16, 1
    s_and_b32 s17, {W}, 1
    s_add_u32 s16, s16, s17
    s_lshl_b32 s16, s16, 10
    s_mul_i32 s17, {LAY}, {7168 * KB}
    s_add_u32 s16, s16, s17
    s_add_u32 s52, s16, {HB}
    s_lshl_b32 s53, {LAY}, 1
    s_add_u32 s53, s53, 1
    ''')
    nb = CFG['wd_bubble']
    for i in range(nb):
        wdload(A, i)
    wait_x(A)
    stamp(A)

    def xload(kg):
        A(f'buffer_load_dwordx4 {a(4 * kg, 4)}, v1, s[8:11], s34 offen offset:{(kg & 3) * 1024} sc1')
        if kg & 3 == 3:
            A('s_add_u32 s34, s34, 4096')
    for kg in range(D):
        xload(kg)
        if kg == 1:
            stats_load(A, STR, 's35')
    items = []
    for kg in range(32):
        for t in range(3):
            items.append((t, kg, (3 * kg + t) * KB, 3 * kg + t))
    for t in range(3):
        items.append((t, 32, L_XG + t * KB, None))
    for t in range(3, 7):
        for kg in range(32):
            p = 32 * t + kg
            items.append((t, kg, (p * KB) % RING, p))
        items.append((t, 32, L_XG + t * KB, None))
    N = len(items)
    accreg = lambda t: ACC + 16 * (t if t < 4 else t - 4)
    NB, LAG = 6, 3
    buf = lambda i: v(WB + 4 * (i % NB), 4)

    def epi(t):
        g = accreg(t)
        pk = E + 8 + 4 * (t & 1)
        L = []
        for i0 in range(0, 8, 4):
            R = range(i0, i0 + 4)
            L += [f'v_mul_f32 {v(E + i)}, {v(MEAN)}, {v(g + i)}' for i in R]
            L += [f'v_exp_f32 {v(E + i)}, {v(E + i)}' for i in R]
            L += [f'v_fma_f32 {v(E + i)}, {v(E + i)}, {v(RSTD)}, {v(RSTD)}' for i in R]
            L += [f'v_rcp_f32 {v(E + i)}, {v(E + i)}' for i in R]
            L += [f'v_mul_f32 {v(E + i)}, {v(E + i)}, {v(g + 8 + i)}' for i in R]
            L += [f'v_cvt_pk_bf16_f32 {v(pk + i // 2)}, {v(E + i)}, {v(E + i + 1)}' for i in R[::2]]
        L.append(lambda: A(f'buffer_store_dwordx4 {v(pk, 4)}, v1, s[8:11], s52 offen {sc.h}', tok=f'h{t}'))
        L.append(f's_add_u32 s52, s52, {8 * KB}')
        return L
    stat = stats_combine(STR, MEAN, RSTD, T, XF)
    stat += [f'v_mul_f32 {v(MEAN)}, {f2u(-LOG2E)}, {v(RSTD)}', f'v_rcp_f32 {v(RSTD)}, {v(RSTD)}']
    issue_after = {4: [6], 5: [7], 6: [8], 7: [9], 8: [10], 9: [11], 10: [12], 11: [13]}
    wd_next = [nb]
    wd_end = min(56, nb + CFG['wd_k3'])
    groups = []
    for i in range(N + LAG):
        g = []
        if i < N:
            t, kg, ad, p = items[i]
            if p is not None and p % 16 == 0 and (p == 0 or p >= 64):
                j = p // 16
                toks = [f'g{q}' for q in range(6)] + ['xfw'] if j == 0 else ([f'g{j}'] if j >= 6 else [])
                g.append(lambda j=j, toks=toks: (A.wait(*toks), A('s_barrier'),
                                                 [dma_chunk(A, 's32', q % 9, f'g{q}') for q in issue_after.get(j, [])]))
            g.append(lds_rd(buf(i), ad))
        if i >= LAG:
            t, kg, ad, p = items[i - LAG]
            xf = a(4 * kg, 4) if kg < 32 else v(XF, 4)
            acc = v(accreg(t), 16)
            g.append(f'{MF} {acc}, {buf(i - LAG)}, {xf}, {"0" if kg == 0 else acc}')
            if i - LAG < 96 and t == 2 and kg + D < 32:
                g.append(lambda kg=kg: xload(kg + D))
            if i - LAG >= 99 and (i - LAG) % 4 == 2 and wd_next[0] < wd_end:
                g.append(lambda q=wd_next[0]: wdload(A, q))
                wd_next[0] += 1
        groups.append(g)
    b = lambda t: 99 + 33 * t + LAG + 1
    emit_with_fill(A, groups[:3 + LAG], [], 0)
    stamp(A)
    emit_with_fill(A, groups[3 + LAG:30], [], 0)
    emit_with_fill(A, groups[30:92], stat, 1)
    emit_with_fill(A, groups[92:b(0) + 1], [], 0)
    stamp(A)
    emit_with_fill(A, groups[b(0) + 1:b(1)], epi(0) + epi(1), 3)
    emit_with_fill(A, groups[b(1):b(2)], epi(2) + epi(3), 3)
    emit_with_fill(A, groups[b(2):b(3)], epi(4), 2)
    fa = b(3) + 10
    e5 = epi(5)
    emit_with_fill(A, groups[b(3):fa], e5[:20], 2)
    A.wait('h4')
    flag(A, 's47', 's53', sc.f)
    emit_with_fill(A, groups[fa:], e5[20:], 2)
    stamp(A)
    for x in epi(6):
        run(A, x)
    stamp(A)
    return wd_next[0]


def k4(A, m, sc, wd0):
    D = CFG['hdepth']
    A(f'''
    s_mul_i32 s34, {RB64}, {224 * KB}
    s_mul_i32 s16, {W}, {56 * KB}
    s_add_u32 s34, s34, s16
    s_mul_i32 s17, {LAY}, {7168 * KB}
    s_add_u32 s34, s34, s17
    s_add_u32 s34, s34, {HB}
    s_add_u32 s54, s53, 1
    ''')
    poll(A, 'v139', 's51', 's53')
    A.wait('h6')
    flag(A, 's47', 's54', sc.f)
    stamp(A)
    wd = [wd0]

    def hload(st):
        while wd[0] < min(56, 2 * st + 2):
            wdload(A, wd[0])
            wd[0] += 1
        if st == 20:
            stamp(A)
            poll(A, 'v139', 's51', 's54')
            stamp(A)
        for r in range(2):
            A(f'buffer_load_dwordx4 {a(8 * (st % 16) + 4 * r, 4)}, {("v8", "v9")[r]}, s[8:11], s34 offen '
              f'offset:{(st & 1) * 2048} sc1')
        if st & 1:
            A('s_add_u32 s34, s34, 4096')
    for st in range(D):
        hload(st)
    for st in range(28):
        for r, c in ((0, 0), (0, 1), (1, 0), (1, 1)):
            t = v(ACC + 16 * (2 * r + c), 16)
            A(f'{MF} {t}, {wd_reg(2 * st + c)}, {a(8 * (st % 16) + 4 * r, 4)}, {"0" if st == 0 else t}')
        if st == 0:
            stamp(A)
        if st + D < 28:
            hload(st + D)
        if st + D == 28:
            A('s_barrier')
            A(f's_cmp_lg_u32 {LAY}, 0\ns_cbranch_scc1 {m}_nowq')
            wqkv_dma_start(A)
            A.label(m + '_nowq')
    stamp(A)
    reduce_epilogue(A, m)
    A(f's_cmp_lg_u32 {LAY}, 0\ns_cbranch_scc1 {m}_final')
    publish_x(A, 2, sc)
    stamp(A)
    wait_x(A)
    stamp(A)
    stamp(A, True)
    n = NST[0]
    stamp_flush(A, 1)
    A(f's_mov_b32 {LAY}, 1\ns_branch {m}')
    A.label(m + '_final')
    for f in range(2):
        r = RES + 4 * f
        A(f'v_permlane32_swap_b32 {v(r)}, {v(r + 2)}\nv_permlane32_swap_b32 {v(r + 1)}, {v(r + 3)}')
    A(f'''
    s_mov_b64 s[12:13], s[60:61]
    s_mov_b32 s14, {2048 * KB}
    s_mov_b32 s15, 0x20000
    v_lshlrev_b32 v7, 10, v2
    v_lshl_add_u32 v7, v3, 4, v7
    buffer_store_dwordx4 {v(RES, 4)}, v7, s[12:15], s57 offen
    buffer_store_dwordx4 {v(RES + 4, 4)}, v7, s[12:15], s57 offen offset:32
    ''')
    if CFG['diag']:
        NST[0] = n - 2
        A('s_waitcnt vmcnt(0)')
        stamp(A)
        stamp(A, True)
        stamp_flush(A, 2)
    A('s_endpgm')


def body(A, m, sc):
    A.label(m)
    stamp(A)
    k1(A, m, sc)
    k2(A, m, sc)
    wd0 = k3(A, m, sc)
    k4(A, m, sc, wd0)


def build(cfg=None):
    if cfg:
        CFG.update(cfg)
    A = Asm()
    A('.p2align 8')
    A.label(KN)
    p0(A)
    from types import SimpleNamespace as NS
    body(A, 'L_fast', NS(**CFG.get('sc', dict(o='sc1', x='sc1', h='sc1', f=''))))
    body(A, 'L_safe', NS(o='sc1', x='sc1', h='sc1', f='sc1'))
    A.label('L_end')
    A('s_endpgm')
    mx = A.maxreg()
    assert mx['v'] < 256 and mx['a'] < 256 and mx['s'] < 100, mx
    txt = A.finalize([KN])
    head = f'; @launch grid=(256,1,1) block=(256,1,1) lds={LDS}\n'
    head += f'.amdgcn_target "amdgcn-amd-amdhsa--gfx950"\n.text\n.globl {KN}\n.type {KN},@function\n'
    tail = f'''
.section .rodata,"a"
.p2align 6
.amdhsa_kernel {KN}
  .amdhsa_next_free_vgpr 512
  .amdhsa_next_free_sgpr 100
  .amdhsa_accum_offset 256
  .amdhsa_group_segment_fixed_size 0
  .amdhsa_kernarg_size 80
  .amdhsa_user_sgpr_count 2
  .amdhsa_user_sgpr_kernarg_segment_ptr 1
  .amdhsa_system_sgpr_workgroup_id_x 1
  .amdhsa_float_denorm_mode_32 3
.end_amdhsa_kernel
'''
    return head + txt + tail


if __name__ == '__main__':
    import json
    out = sys.argv[1] if len(sys.argv) > 1 else f'cdna_kernels/{NAME}.s'
    cfg = json.loads(sys.argv[2]) if len(sys.argv) > 2 else None
    open(out, 'w').write(build(cfg))
    print('wrote', out)
```

```python
import sys, math
from asmlib import Asm, v, a, s, f2u

KB = 1024
NAME = 'interleave_layers__linear_attn_block__glu_gated_glu__prompt'
KN = NAME + '_kernel'
off = 0


def alloc(n):
    global off
    o = off
    off += (n + 4095) // 4096 * 4096
    return o


WQKV = alloc(16 * 96 * KB)
WO = alloc(512 * KB)
WGU = alloc(16 * 224 * KB)
WD = alloc(1792 * KB)
XB = alloc(4 * 2048 * KB)
X = [XB + j * 2048 * KB for j in range(4)]
SB = alloc(4 * 256 * KB)
ST = [SB + j * 256 * KB for j in range(4)]
OB = alloc(2 * 2048 * KB)
HB = alloc(2 * 7168 * KB)
KVS = 256 * 2176
KVP = alloc(2 * KVS)
CSQ = alloc(256 * 384)
CSG = alloc(256 * 1024)
FL = alloc(20 * KB)
XFL, OFL, HFL, CFL = FL, FL + 8 * KB, FL + 12 * KB, FL + 16 * KB
DIAG = 128 << 20
WS_BYTES = 268435456
LOG2E = math.log2(math.e)
MF = 'v_mfma_f32_32x32x16_bf16'

RING = 144 * KB
L_RED = 96 * KB
L_XQ = 144 * KB
L_XG = 147 * KB
L_RS = 154 * KB
L_KV = 155 * KB
LDS = 160 * KB

W, RB, C, RB32, RB64, CB, LAY, XCC = 's20', 's21', 's22', 's23', 's24', 's25', 's26', 's27'
TOFF, SOFF, XFA = 's28', 's29', 's30'
ACC, RES = 16, 80
CFG = dict(diag=0, force_safe=0, xdepth=8, hdepth=10, xmap=8,
           w1_g=4, w2_g=4, w3_g=8, w4_wd=4, w5_g=8, w5_wd=0, k3_wd=(0, 3, 3, 11, 8), kvflag_at=20,
           k4_q=8, w7_q=8, hearly=6, p0b_late=1)
NST = [0]


def stamp(A, real=False):
    if not CFG['diag']:
        return
    i = NST[0]
    NST[0] += 1
    A(f'{"s_memrealtime" if real else "s_memtime"} s[66:67]\ns_waitcnt lgkmcnt(0)\nv_writelane_b32 v15, s66, {i}')


def stamp_flush(A, seg):
    if not CFG['diag']:
        return
    A(f'''
    s_lshl_b32 s16, s2, 2
    s_add_u32 s16, s16, {W}
    s_mul_i32 s16, s16, 3
    s_add_u32 s16, s16, {seg}
    s_lshl_b32 s16, s16, 8
    s_add_u32 s16, s16, {DIAG}
    v_lshlrev_b32 v7, 2, v0
    buffer_store_dword v15, v7, s[8:11], s16 offen
    v_mov_b32 v15, 0
    ''')
    NST[0] = 0


def swap_add(A, r, t):
    A(f'''
    v_mov_b32 {v(t)}, {v(r)}
    v_permlane32_swap_b32 {v(t)}, {v(r)}
    v_add_f32 {v(r)}, {v(t)}, {v(r)}
    ''')


def stats_part(A, f, t, soff, sc, tok=None):
    A(f'v_pk_add_f32 {v(t, 2)}, {v(f, 2)}, {v(f + 2, 2)}')
    A(f'v_pk_add_f32 {v(t + 2, 2)}, {v(f + 4, 2)}, {v(f + 6, 2)}')
    for i in range(8, 16, 4):
        A(f'v_pk_add_f32 {v(t, 2)}, {v(t, 2)}, {v(f + i, 2)}')
        A(f'v_pk_add_f32 {v(t + 2, 2)}, {v(t + 2, 2)}, {v(f + i + 2, 2)}')
    A(f'v_pk_add_f32 {v(t, 2)}, {v(t, 2)}, {v(t + 2, 2)}')
    A(f'v_add_f32 {v(t)}, {v(t)}, {v(t + 1)}')
    swap_add(A, t, t + 2)
    A(f'v_mul_f32 {v(t)}, {f2u(1 / 32)}, {v(t)}')
    for i in range(0, 16, 2):
        A(f'v_pk_add_f32 {v(f + i, 2)}, {v(f + i, 2)}, {v(t, 2)} op_sel_hi:[1,0] neg_lo:[0,1] neg_hi:[0,1]')
    A(f'v_pk_mul_f32 {v(t + 2, 2)}, {v(f, 2)}, {v(f, 2)}')
    A(f'v_pk_mul_f32 {v(f, 2)}, {v(f + 2, 2)}, {v(f + 2, 2)}')
    for i in range(4, 16, 4):
        A(f'v_pk_fma_f32 {v(t + 2, 2)}, {v(f + i, 2)}, {v(f + i, 2)}, {v(t + 2, 2)}')
        A(f'v_pk_fma_f32 {v(f, 2)}, {v(f + i + 2, 2)}, {v(f + i + 2, 2)}, {v(f, 2)}')
    A(f'v_pk_add_f32 {v(t + 2, 2)}, {v(t + 2, 2)}, {v(f, 2)}')
    A(f'v_add_f32 {v(t + 1)}, {v(t + 2)}, {v(t + 3)}')
    swap_add(A, t + 1, t + 2)
    A(f'buffer_store_dwordx2 {v(t, 2)}, v12, s[8:11], {soff} offen {sc}', tok=tok)


def stats_load(A, dst, soff):
    for q in range(8):
        A(f'buffer_load_dwordx2 {v(dst + 2 * q, 2)}, v4, s[8:11], {soff} offen offset:{q * 256} sc1')


def stats_combine(r, mean, rstd, t, xf):
    L = []
    L.append(f'v_add_f32 {v(mean)}, {v(r)}, {v(r + 2)}')
    L.append(f'v_add_f32 {v(rstd)}, {v(r + 1)}, {v(r + 3)}')
    for q in range(2, 8):
        L.append(f'v_add_f32 {v(mean)}, {v(mean)}, {v(r + 2 * q)}')
        L.append(f'v_add_f32 {v(rstd)}, {v(rstd)}, {v(r + 2 * q + 1)}')
    L += [f'v_mov_b32 {v(t)}, {v(mean)}',
          f'v_permlane32_swap_b32 {v(t)}, {v(mean)}',
          f'v_add_f32 {v(mean)}, {v(t)}, {v(mean)}',
          f'v_mul_f32 {v(mean)}, {f2u(1 / 16)}, {v(mean)}']
    for q in range(8):
        L.append(f'v_sub_f32 {v(r + 2 * q)}, {v(r + 2 * q)}, {v(mean)}')
    L.append(f'v_mul_f32 {v(t)}, {v(r)}, {v(r)}')
    for q in range(1, 8):
        L.append(f'v_fmac_f32 {v(t)}, {v(r + 2 * q)}, {v(r + 2 * q)}')
    L += [f'v_fmamk_f32 {v(rstd)}, {v(t)}, {f2u(32.0)}, {v(rstd)}',
          f'v_mov_b32 {v(t)}, {v(rstd)}',
          f'v_permlane32_swap_b32 {v(t)}, {v(rstd)}',
          f'v_add_f32 {v(rstd)}, {v(t)}, {v(rstd)}',
          f'v_mov_b32 {v(t)}, {f2u(1e-5)}',
          f'v_fmamk_f32 {v(rstd)}, {v(rstd)}, {f2u(1 / 512)}, {v(t)}',
          f'v_rsq_f32 {v(rstd)}, {v(rstd)}',
          f'v_sub_f32 {v(t)}, 0, {v(mean)}',
          f'v_cvt_pk_bf16_f32 {v(xf + 1)}, {v(t)}, 0',
          f'v_lshlrev_b32 {v(t + 1)}, 16, {v(xf + 1)}',
          f'v_sub_f32 {v(t + 1)}, {v(t)}, {v(t + 1)}',
          f'v_cvt_pk_bf16_f32 {v(xf)}, {v(t)}, {v(t + 1)}',
          f'v_mov_b32 {v(xf + 3)}, 0',
          f'v_mov_b32 {v(xf + 2)}, 0']
    return L


def run(A, x):
    x() if callable(x) else A(x)


def emit_with_fill(A, main, fill, per):
    fill = list(fill)
    k = 0
    for g in main:
        for x in g:
            run(A, x)
        for _ in range(per):
            if k < len(fill):
                run(A, fill[k])
                k += 1
    for x in fill[k:]:
        run(A, x)


def poll(A, vaddr, soff, val, width=1, srd='s[8:11]', pre=None):
    lab = A.uid('poll')
    if pre:
        A(f'v_cmp_gt_u32 vcc, {val}, {pre}\ns_cbranch_vccz {lab}_x')
    A('s_mov_b32 s58, 0')
    A.label(lab)
    A(f's_add_u32 s58, s58, 1\ns_cmp_gt_u32 s58, 0x200000\ns_cbranch_scc1 {lab}_x')
    if width == 1:
        A(f'buffer_load_dword {pre or "v14"}, {vaddr}, {srd}, {soff} offen sc1')
    else:
        A(f'buffer_load_dwordx2 v[140:141], {vaddr}, {srd}, {soff} offen sc1\nv_min_u32 v14, v140, v141')
    A(f'v_cmp_gt_u32 vcc, {val}, {pre or "v14"}\ns_cbranch_vccnz {lab}')
    A.label(lab + '_x')


def presample(A, reg, vaddr, soff, srd='s[8:11]'):
    A(f'buffer_load_dword {reg}, {vaddr}, {srd}, {soff} offen sc1')


def even_fill(A, main, fill):
    fill = list(fill)
    k, n = 0, len(main)
    for i, g in enumerate(main):
        for x in g:
            run(A, x)
        while k < len(fill) * (i + 1) // n:
            run(A, fill[k])
            k += 1


def flag(A, addr, val, sc):
    A(f'''
    v_mov_b32 v14, {val}
    s_mov_b64 exec, 1
    buffer_store_dword v14, v13, s[8:11], {addr} offen {sc}
    s_mov_b64 exec, -1
    ''')


def lds_rd(dst, ad):
    return f'ds_read_b128 {dst}, {("v1", "v5", "v6")[ad >> 16]} offset:{ad & 65535}'


def dma_chunk(A, soff, slot, tok):
    A(f's_add_u32 m0, s31, {slot * 16 * KB}')
    for q in range(4):
        A(f'buffer_load_dwordx4 v1, s[8:11], {soff} offen offset:{q * 1024} sc1 lds', tok=tok)
    A(f's_add_u32 {soff}, {soff}, {16 * KB}')


class Dma:
    def __init__(self, A, name, soff, nslots=9):
        self.A, self.name, self.soff, self.i, self.ns = A, name, soff, 0, nslots

    def one(self):
        j, q = divmod(self.i, 4)
        A = self.A
        A(f's_add_u32 m0, s31, {(j % self.ns) * 16 * KB}')
        A(f'buffer_load_dwordx4 v1, s[8:11], {self.soff} offen offset:{q * 1024} sc1 lds', tok=f'{self.name}{j}')
        if q == 3:
            A(f's_add_u32 {self.soff}, {self.soff}, {16 * KB}')
        self.i += 1

    def emit(self, n, fresh=True):
        for k in range(n):
            j, q = divmod(self.i, 4)
            if (k == 0 and fresh) or q == 0:
                self.one()
            else:
                self.A(f'buffer_load_dwordx4 v1, s[8:11], {self.soff} offen offset:{q * 1024} sc1 lds',
                       tok=f'{self.name}{j}')
                if q == 3:
                    self.A(f's_add_u32 {self.soff}, {self.soff}, {16 * KB}')
                self.i += 1

    def upto(self, chunk):
        self.emit(4 * chunk - self.i)


def colsum_frag(A, src, soff, stride, ldsaddr, t):
    def load():
        for q in range(8):
            if q * stride < 4096:
                A(f'buffer_load_dword {v(src + q)}, v7, s[8:11], {soff} offen offset:{q * stride} sc1')
            else:
                if (q - 1) * stride < 4096:
                    A(f's_add_u32 s19, {soff}, {q * stride}')
                    q0 = q
                A(f'buffer_load_dword {v(src + q)}, v7, s[8:11], s19 offen offset:{(q - q0) * stride} sc1')

    def fin():
        for q in range(1, 8):
            A(f'v_add_f32 {v(src)}, {v(src)}, {v(src + q)}')
        swap_add(A, src, src + 1)
        A(f'''
        v_cvt_pk_bf16_f32 {v(t)}, {v(src)}, {v(src)}
        v_lshlrev_b32 {v(src + 1)}, 16, {v(t)}
        v_sub_f32 {v(src + 1)}, {v(src)}, {v(src + 1)}
        v_cvt_pk_bf16_f32 {v(t + 1)}, {v(src + 1)}, 0
        v_cmp_eq_u32 vcc, 0, v3
        v_mov_b32 {v(t + 2)}, 0
        v_mov_b32 {v(t + 3)}, 0
        v_cndmask_b32 {v(t)}, 0, {v(t)}, vcc
        v_cndmask_b32 {v(t + 1)}, 0, {v(t + 1)}, vcc
        v_add_u32 {v(src + 2)}, {ldsaddr}, v1
        ''')
        A(f'ds_write_b128 {v(src + 2)}, {v(t, 4)}', tok='xfw')
    return load, fin


def p0(A):
    A(f'''
    s_cmp_ge_u32 s2, 256
    s_cbranch_scc1 L_end
    s_load_dwordx4 s[60:63], s[0:1], 56
    s_load_dwordx2 s[8:9], s[0:1], 72
    s_load_dwordx4 s[32:35], s[0:1], 0
    s_load_dwordx2 s[40:41], s[0:1], 16
    s_load_dwordx4 s[44:47], s[0:1], 32
    s_load_dwordx2 s[52:53], s[0:1], 48
    ''')
    if CFG['diag']:
        A('v_mov_b32 v15, 0')
    A(f'''
    v_lshrrev_b32 v1, 6, v0
    v_and_b32 v0, 63, v0
    v_readfirstlane_b32 {W}, v1
    v_lshlrev_b32 v1, 4, v0
    s_getreg_b32 {XCC}, hwreg(HW_REG_XCC_ID, 0, 4)
    s_mov_b32 s10, {WS_BYTES}
    s_mov_b32 s11, 0x20000
    s_and_b32 s16, s2, 7
    s_lshr_b32 s17, s2, 3
    ''')
    if CFG['xmap'] == 8:
        A(f's_lshl_b32 s16, s16, 1\ns_lshr_b32 s18, s17, 4\ns_add_u32 {RB}, s16, s18\ns_and_b32 {C}, s17, 15')
    else:
        A(f's_and_b32 s18, s16, 3\ns_lshl_b32 s18, s18, 2\ns_and_b32 s19, s17, 3\ns_add_u32 {RB}, s18, s19\n'
          f's_lshr_b32 s16, s16, 2\ns_lshl_b32 s16, s16, 3\ns_lshr_b32 s17, s17, 2\ns_add_u32 {C}, s16, s17')
    A(f'''
    s_lshl_b32 {RB32}, {RB}, 2
    s_add_u32 {RB32}, {RB32}, {W}
    s_lshl_b32 {RB64}, {RB}, 1
    s_and_b32 s16, {C}, 1
    s_add_u32 {RB64}, {RB64}, s16
    s_lshr_b32 {CB}, {C}, 1
    s_lshr_b32 s16, {W}, 1
    s_and_b32 s17, {W}, 1
    s_lshl_b32 s18, {RB64}, 1
    s_add_u32 s18, s18, s16
    s_lshl_b32 s19, {CB}, 1
    s_add_u32 s19, s19, s17
    s_lshl_b32 {TOFF}, s18, 4
    s_add_u32 {TOFF}, {TOFF}, s19
    s_lshl_b32 {SOFF}, {TOFF}, 8
    s_lshl_b32 {TOFF}, {TOFF}, 11
    s_lshl_b32 {XFA}, s18, 7
    s_lshl_b32 s56, s19, 2
    s_add_u32 {XFA}, {XFA}, s56
    s_add_u32 {XFA}, {XFA}, {XFL}
    s_lshl_b32 s57, s18, 15
    s_lshl_b32 s56, s19, 6
    s_add_u32 s57, s57, s56
    s_lshl_b32 s31, {W}, 12
    s_lshl_b32 s16, s16, 10
    s_lshl_b32 s17, s17, 10
    v_add_u32 v8, s16, v1
    v_xor_b32 v9, 0x400, v8
    v_add_u32 v10, s17, v1
    v_xor_b32 v11, 0x400, v10
    v_and_b32 v2, 31, v0
    v_lshrrev_b32 v3, 5, v0
    v_lshlrev_b32 v12, 3, v2
    v_lshl_add_u32 v4, v3, 11, v12
    v_add_u32 v5, 0x10000, v1
    v_add_u32 v6, 0x20000, v1
    v_mov_b32 v13, 0
    s_mov_b32 {LAY}, 0
    v_lshlrev_b32 v16, 10, v2
    v_lshl_add_u32 v16, v3, 4, v16
    v_lshrrev_b32 v17, 2, v0
    v_and_b32 v18, 3, v0
    v_lshlrev_b32 v18, 4, v18
    v_mul_u32_u24 v19, 3072, v17
    v_add_u32 v19, v19, v18
    v_mul_u32_u24 v20, 3584, v17
    v_add_u32 v20, v20, v18
    v_lshl_add_u32 v21, v17, 10, v18
    s_min_u32 s59, {W}, 2
    s_waitcnt lgkmcnt(0)
    ''')
    stamp(A, True)
    stamp(A)
    A(f'''
    s_cmp_lg_u32 s2, 0
    s_cbranch_scc1 L_noclr0
    v_mov_b32 v24, 0
    v_mov_b32 v25, 0
    v_mov_b32 v26, 0
    v_mov_b32 v27, 0
    s_mul_i32 s16, {W}, {5 * KB}
    s_add_u32 s16, s16, {FL}
    buffer_store_dwordx4 v[24:27], v1, s[8:11], s16 offen sc1
    buffer_store_dwordx4 v[24:27], v1, s[8:11], s16 offen offset:1024 sc1
    buffer_store_dwordx4 v[24:27], v1, s[8:11], s16 offen offset:2048 sc1
    buffer_store_dwordx4 v[24:27], v1, s[8:11], s16 offen offset:3072 sc1
    s_add_u32 s16, s16, 4096
    ''')
    A('buffer_store_dwordx4 v[24:27], v1, s[8:11], s16 offen sc1', tok='clr')
    A.label('L_noclr0')
    A(f'''
    s_mov_b64 s[36:37], s[34:35]
    s_mov_b32 s34, {2048 * KB}
    s_mov_b32 s35, 0x20000
    s_mov_b32 s38, {1536 * KB}
    s_mov_b32 s39, 0x20000
    s_mov_b32 s42, {512 * KB}
    s_mov_b32 s43, 0x20000
    s_mov_b64 s[48:49], s[46:47]
    s_mov_b32 s46, {1792 * KB}
    s_mov_b32 s47, 0x20000
    s_mov_b32 s50, {1792 * KB}
    s_mov_b32 s51, 0x20000
    s_mov_b32 s54, {1792 * KB}
    s_mov_b32 s55, 0x20000
    s_mov_b64 s[12:13], s[62:63]
    s_mov_b32 s14, 256
    s_mov_b32 s15, 0x20000
    buffer_load_dwordx4 {v(RES, 4)}, v16, s[32:35], s57 offen
    buffer_load_dwordx4 {v(RES + 4, 4)}, v16, s[32:35], s57 offen offset:32
    s_mul_i32 s56, {W}, {9 * KB}
    s_add_u32 s56, s56, {L_RED}
    ''')
    A(f'''
    s_mul_i32 s16, {RB}, {32 * 3072}
    s_lshl_b32 s17, s59, 10
    s_add_u32 s16, s16, s17
    s_lshl_b32 s17, {C}, 6
    s_add_u32 s16, s16, s17
    s_mov_b32 m0, s56
    ''')
    A('buffer_load_dwordx4 v19, s[36:39], s16 offen lds')
    A(f's_add_u32 s16, s16, {16 * 3072}\ns_add_u32 m0, s56, 1024')
    A('buffer_load_dwordx4 v19, s[36:39], s16 offen lds', tok='pa')
    A('s_cmp_lg_u32 s2, 0\ns_cbranch_scc1 L_noclr')
    A.wait('clr')
    A(f'''
    s_lshl_b32 s16, {W}, 2
    v_mov_b32 v14, 1
    s_mov_b64 exec, 1
    buffer_store_dword v14, v13, s[12:15], s16 offen sc1
    s_mov_b64 exec, -1
    ''')
    A.label('L_noclr')
    def p0b_loads():
        A(f'''
    s_mul_i32 s16, {RB}, {32 * 3584}
    s_mul_i32 s17, {C}, 224
    s_add_u32 s16, s16, s17
    s_lshl_b32 s17, {W}, 6
    s_add_u32 s16, s16, s17
    ''')
        for u in range(2):
            A(f's_add_u32 m0, s56, {(2 + 2 * u) * KB}')
            A('buffer_load_dwordx4 v20, s[44:47], s16 offen lds')
            A(f's_add_u32 m0, s56, {(3 + 2 * u) * KB}')
            A('buffer_load_dwordx4 v20, s[48:51], s16 offen lds')
            if u == 0:
                A(f's_add_u32 s16, s16, {16 * 3584}')
        A(f'''
    s_lshl_b32 s16, {RB64}, 14
    s_lshl_b32 s17, {CB}, 7
    s_add_u32 s16, s16, s17
    s_and_b32 s18, {W}, 1
    s_lshl_b32 s18, s18, 6
    s_add_u32 s16, s16, s18
    s_add_u32 m0, s56, {6 * KB}
    ''')
        A('buffer_load_dwordx4 v21, s[40:43], s16 offen lds')
        A(f'''
    s_and_b32 s16, {C}, 1
    s_lshl_b32 s16, s16, 2
    s_add_u32 s16, s16, {W}
    s_min_u32 s64, s16, 6
    s_mul_i32 s16, {RB}, 7
    s_add_u32 s16, s16, s64
    s_lshl_b32 s16, s16, 14
    s_add_u32 s16, s16, s17
    s_add_u32 m0, s56, {7 * KB}
    ''')
        A('buffer_load_dwordx4 v21, s[52:55], s16 offen lds')
        A(f's_add_u32 s16, s16, 64\ns_add_u32 m0, s56, {8 * KB}')
        A('buffer_load_dwordx4 v21, s[52:55], s16 offen lds', tok='pb')
    A('v_and_b32 v25, 3, v0\nv_lshlrev_b32 v25, 2, v25')
    if not CFG['p0b_late']:
        p0b_loads()
    A(f'''
    v_bfe_u32 v17, v0, 2, 2
    v_lshl_add_u32 v17, v3, 2, v17
    v_lshlrev_b32 v17, 6, v17
    v_and_b32 v18, 3, v0
    v_lshl_add_u32 v17, v18, 3, v17
    v_add_u32 v17, s56, v17
    v_bfe_u32 v18, v0, 4, 1
    v_lshl_add_u32 v22, v18, 5, v17
    v_lshl_add_u32 v23, v18, 10, v17
    s_mov_b32 s65, 0x3f803f80
    s_mov_b32 s19, 0xffff0000
    ''')
    for f in range(2):
        r = RES + 4 * f
        A(f'v_permlane32_swap_b32 {v(r)}, {v(r + 2)}\nv_permlane32_swap_b32 {v(r + 1)}, {v(r + 3)}')
    stamp(A)
    A(f's_add_u32 s16, {TOFF}, {X[0]}\ns_add_u32 s17, {SOFF}, {ST[0]}')
    A(f'buffer_store_dwordx4 {v(RES, 4)}, v1, s[8:11], s16 offen sc1')
    A(f'buffer_store_dwordx4 {v(RES + 4, 4)}, v1, s[8:11], s16 offen offset:1024 sc1')
    for d in range(8):
        A(f'v_lshlrev_b32 {v(32 + 2 * d)}, 16, {v(RES + d)}\nv_and_b32 {v(33 + 2 * d)}, s19, {v(RES + d)}')
    stats_part(A, 32, 28, 's17', 'sc1')

    def tr(dst, base, o):
        A(f'ds_read_b64_tr_b16 {v(dst, 2)}, {base} offset:{o}\nds_read_b64_tr_b16 {v(dst + 2, 2)}, {base} offset:{o + 512}')

    def csum(acc, regs):
        A(f'v_mov_b32 {v(acc)}, 0\nv_mov_b32 {v(acc + 1)}, 0')
        for i, r in enumerate(regs):
            A(f'v_dot2_f32_bf16 {v(acc + (i & 1))}, {v(r)}, s65, {v(acc + (i & 1))}')
        A(f'v_add_f32 {v(acc)}, {v(acc)}, {v(acc + 1)}')
        swap_add(A, acc, acc + 1)
    A.wait('pa')
    tr(32, 'v22', 0)
    tr(36, 'v22', 1024)
    A(f'''
    s_lshl_b32 s16, {RB}, 2
    s_add_u32 s16, s16, s59
    s_sub_u32 s16, s16, 1
    s_lshl_b32 s17, {RB}, 1
    s_add_u32 s17, s17, 64
    s_cmp_eq_u32 s59, 0
    s_cselect_b32 s16, s17, s16
    s_cselect_b32 s18, 1, 2
    s_lshl_b32 s18, s18, 10
    s_mul_i32 s17, {C}, 96
    s_add_u32 s16, s16, s17
    s_lshl_b32 s16, s16, 10
    s_add_u32 s16, s16, {WQKV}
    s_add_u32 s18, s18, s16
    buffer_store_dwordx4 v[32:35], v1, s[8:11], s16 offen sc1
    buffer_store_dwordx4 v[36:39], v1, s[8:11], s18 offen sc1
    ''')
    csum(40, range(32, 40))
    A(f'''
    s_lshl_b32 s16, {C}, 4
    s_add_u32 s16, s16, {RB}
    s_mul_i32 s17, s16, 384
    s_lshl_b32 s18, s59, 7
    s_add_u32 s17, s17, s18
    s_add_u32 s17, s17, {CSQ}
    v_lshlrev_b32 v24, 2, v2
    ''')
    A('buffer_store_dword v40, v24, s[8:11], s17 offen sc1', tok='pas')
    stamp(A)
    poll(A, 'v25', '0', '1', srd='s[12:15]')
    if CFG['p0b_late']:
        p0b_loads()
    A.wait('pas')
    stamp(A)
    A(f'''
    s_lshl_b32 s16, {C}, 6
    s_lshl_b32 s17, {W}, 4
    s_add_u32 s16, s16, s17
    s_add_u32 s16, s16, {RB}
    s_lshl_b32 s16, s16, 2
    s_add_u32 s33, s16, {CFL}
    s_or_b32 s17, {XCC}, 16
    ''')
    flag(A, 's33', '1', 'sc1')
    flag(A, XFA, 's17', 'sc1')
    A.wait('pb')
    for u in range(2):
        for t in range(2):
            tr(32 + 8 * t + 4 * u, 'v23', (2 + 2 * u) * KB + 32 * t)
    tr(48, 'v22', 6 * KB)
    tr(52, 'v22', 7 * KB)
    tr(56, 'v22', 8 * KB)
    A(f'''
    s_lshl_b32 s16, {C}, 4
    s_add_u32 s16, s16, {RB}
    s_lshl_b32 s16, s16, 10
    s_lshl_b32 s17, {W}, 8
    s_add_u32 s16, s16, s17
    s_add_u32 s34, s16, {CSG}
    ''')
    for t in range(2):
        A(f'''
        s_lshl_b32 s16, {W}, 1
        s_add_u32 s16, s16, {t}
        s_mul_i32 s17, {RB}, 6
        s_add_u32 s17, s17, s16
        s_lshl_b32 s18, s16, 5
        s_lshl_b32 s19, {RB}, 1
        s_add_u32 s18, s18, s19
        s_cmp_lt_u32 s16, 3
        s_cselect_b32 s17, s17, s18
        s_cselect_b32 s18, 3, 1
        s_lshl_b32 s18, s18, 10
        s_mul_i32 s19, {C}, 224
        s_add_u32 s17, s17, s19
        s_lshl_b32 s17, s17, 10
        s_add_u32 s17, s17, {WGU}
        s_add_u32 s18, s18, s17
        ''')
        if t == 1:
            A(f's_cmp_eq_u32 {W}, 3\ns_cbranch_scc1 L_notile')
        A(f'buffer_store_dwordx4 {v(32 + 8 * t, 4)}, v1, s[8:11], s17 offen sc1')
        A(f'buffer_store_dwordx4 {v(36 + 8 * t, 4)}, v1, s[8:11], s18 offen sc1')
        csum(60 + 2 * t, range(32 + 8 * t, 40 + 8 * t))
        A(f'buffer_store_dword {v(60 + 2 * t)}, v24, s[8:11], s34 offen offset:{128 * t} sc1')
    A.label('L_notile')
    A(f'''
    s_lshl_b32 s16, {CB}, 5
    s_add_u32 s16, s16, {RB64}
    s_lshl_b32 s16, s16, 1
    s_and_b32 s17, {W}, 1
    s_add_u32 s16, s16, s17
    s_lshl_b32 s16, s16, 10
    s_add_u32 s16, s16, {WO}
    buffer_store_dwordx4 v[48:51], v1, s[8:11], s16 offen sc1
    s_mul_i32 s16, {CB}, 112
    s_lshr_b32 s17, {RB}, 2
    s_mul_i32 s17, s17, 28
    s_add_u32 s16, s16, s17
    s_lshl_b32 s17, s64, 2
    s_add_u32 s16, s16, s17
    s_and_b32 s17, {RB}, 3
    s_add_u32 s16, s16, s17
    s_lshl_b32 s16, s16, 11
    s_add_u32 s16, s16, {WD}
    buffer_store_dwordx4 v[52:55], v1, s[8:11], s16 offen sc1
    ''')
    A('buffer_store_dwordx4 v[56:59], v1, s[8:11], s16 offen offset:1024 sc1', tok='pbs')
    stamp(A)
    A(f's_lshl_b32 s35, {RB32}, 7\ns_add_u32 s35, s35, {XFL}\nv_and_b32 v25, 15, v0\nv_lshlrev_b32 v25, 2, v25')
    presample(A, 'v26', 'v25', 's35')
    A(f's_lshl_b32 s16, {C}, 8\ns_add_u32 s16, s16, {CFL}\nv_lshlrev_b32 v7, 2, v0')
    poll(A, 'v7', 's16', '1')
    stamp(A)
    A.wait('pbs')
    flag(A, 's33', '2', 'sc1')
    A(f'''
    s_mul_i32 s16, {C}, {16 * 384}
    s_lshl_b32 s17, s59, 7
    s_add_u32 s16, s16, s17
    s_add_u32 s16, s16, {CSQ}
    v_mul_u32_u24 v7, {8 * 384}, v3
    v_add_u32 v7, v7, v24
    s_add_u32 s17, s59, 2
    s_cmp_ge_u32 s17, 3
    s_cselect_b32 s18, 3, 0
    s_sub_u32 s17, s17, s18
    s_lshl_b32 s17, s17, 10
    s_add_u32 s17, s17, {L_XQ}
    ''')
    poll(A, 'v25', 's35', '16', pre='v26')
    ld, fin = colsum_frag(A, 32, 's16', 384, 's17', 40)
    ld()
    wqkv_start(A).upto(2)
    fin()
    A(f'v_and_b32 v26, 15, v26\nv_cmp_ne_u32 vcc, {XCC}, v26')
    stamp(A)
    if CFG.get('dbgstamp'):
        A(f'''
        s_cmp_lg_u32 s2, {CFG['dbgstamp']}
        s_cbranch_scc1 L_nodbg
        s_cmp_lg_u32 {W}, 0
        s_cbranch_scc1 L_nodbg
        v_readlane_b32 s16, v15, 1
        v_subrev_u32 v16, s16, v15
        v_lshlrev_b32 v7, 2, v0
        s_mov_b64 exec, 0xfff
        buffer_store_dword v16, v7, s[12:15], 0 offen offset:16
        s_mov_b64 exec, -1
        ''')
        A.label('L_nodbg')
    stamp_flush(A, 0)
    if CFG['force_safe'] or CFG['xmap'] != 8:
        A('s_branch L_safe')
    else:
        A('s_cbranch_vccnz L_safe')


def wqkv_start(A):
    A(f's_mul_i32 s32, {C}, {96 * KB}\ns_add_u32 s32, s32, s31\ns_add_u32 s32, s32, {WQKV}')
    return Dma(A, 'q', 's32')


BC0 = 'op_sel_hi:[1,0]'
BC1 = 'op_sel:[0,1,0] op_sel_hi:[1,1,1]'


def wd_reg(i):
    return a(128 + 4 * i, 4) if i < 32 else v(160 + 4 * (i - 32), 4)


class St:
    pass


def wdload(A, S, n=1):
    for _ in range(n):
        if not S.wdq:
            return
        i = S.wdq.pop(0)
        st, c = i >> 1, i & 1
        base = 4096 * (st >> 1)
        if base != S.wdbase:
            A(f's_add_u32 s36, s36, {base - S.wdbase}' if base > S.wdbase else f's_sub_u32 s36, s36, {S.wdbase - base}')
            S.wdbase = base
        A(f'buffer_load_dwordx4 {wd_reg(i)}, {("v10", "v11")[c]}, s[8:11], s36 offen offset:{(st & 1) * 2048} sc1')


def k1(A, m, sc, S):
    KT, VT, QT = 16, 32, 48
    WB, STR, MEAN, RSTD, T, XF, RL = 88, 112, 128, 129, 130, 132, 144
    P = 88
    D = CFG['xdepth']
    A(f'''
    s_lshl_b32 s34, {LAY}, 22
    s_lshl_b32 s16, {RB32}, 15
    s_add_u32 s34, s34, s16
    s_add_u32 s34, s34, {XB}
    s_lshl_b32 s35, {LAY}, 19
    s_lshl_b32 s16, {RB32}, 12
    s_add_u32 s35, s35, s16
    s_add_u32 s35, s35, {SB}
    ''')

    def xload(kg):
        A(f'buffer_load_dwordx4 {a(4 * kg, 4)}, v1, s[8:11], s34 offen offset:{(kg & 3) * 1024} sc1')
        if kg & 3 == 3:
            A('s_add_u32 s34, s34, 4096')

    def woload(i):
        hh, c = i >> 1, i & 1
        A(f'buffer_load_dwordx4 {a(128 + 8 * hh + 4 * c, 4)}, {("v10", "v11")[c]}, s[8:11], s36 offen '
          f'offset:{(hh & 1) * 2048} sc1')
        if i & 3 == 3:
            A('s_add_u32 s36, s36, 4096')
    for kg in range(D):
        xload(kg)
        if kg == 3:
            stats_load(A, STR, 's35')
    Q = Dma(A, 'q', 's32')
    Q.i = 8

    def l0_chunk(j):
        lab = A.uid('l0')
        A(f's_cmp_lg_u32 {LAY}, 0\ns_cbranch_scc1 {lab}')
        Q.upto(j + 1)
        A.label(lab)
    NB, LAG = 6, 2
    buf = lambda p: v(WB + 4 * (p % NB), 4)
    stat = stats_combine(STR, MEAN, RSTD, T, XF)
    stat += [f's_lshl_b32 s16, {W}, 7', f's_add_u32 s16, s16, {L_RS}', f'v_lshl_add_u32 v7, v2, 2, s16',
             f'ds_write_b32 v7, {v(RSTD)}', f'v_lshl_add_u32 v7, v3, 4, s16']
    stat += [f'ds_read_b128 {v(STR + 4 * j, 4)}, v7 offset:{32 * j}' for j in range(4)]
    stat += [f's_mov_b32 s38, {f2u(LOG2E)}', f'v_mul_f32 {v(MEAN)}, s38, {v(RSTD)}',
             f's_mov_b32 s40, {f2u(1e-6)}', f's_mov_b32 s41, {f2u(1e-6)}']
    addr = f'''
    v_bfe_u32 v7, v0, 4, 1
    v_lshlrev_b32 v136, 8, v7
    v_lshlrev_b32 v137, 4, v7
    v_bfe_u32 v7, v0, 2, 1
    v_lshlrev_b32 v138, 3, v7
    v_bfe_u32 v7, v0, 3, 1
    v_lshl_add_u32 v138, v7, 2, v138
    v_and_b32 v7, 3, v0
    v_add_u32 v138, v138, v7
    s_mul_i32 s16, {W}, 2176
    s_add_u32 s16, s16, {L_RED}
    v_add_u32 v136, v136, v138
    v_lshl_add_u32 v136, v3, 6, v136
    v_lshl_add_u32 v136, v136, 2, s16
    v_add_u32 v137, v137, v138
    v_lshl_add_u32 v137, v137, 2, s16
    s_lshl_b32 s16, {W}, 9
    v_lshl_add_u32 v138, v0, 3, s16
    v_add_u32 v139, {L_RED}, v138
    s_lshl_b32 s16, {W}, 5
    s_add_u32 s16, s16, 2048
    v_and_b32 v7, 7, v0
    v_lshl_add_u32 v142, v7, 2, s16
    v_add_u32 v143, {L_RED}, v142
    s_mul_i32 s39, {LAY}, {KVS}
    s_mul_i32 s16, {C}, {16 * 2176}
    s_add_u32 s39, s39, s16
    s_add_u32 s39, s39, {KVP}
    s_mul_i32 s16, {RB}, 2176
    s_add_u32 s37, s39, s16
    s_lshl_b32 s36, {CB}, 16
    s_lshl_b32 s16, {W}, 14
    s_add_u32 s36, s36, s16
    s_add_u32 s36, s36, {WO}
    v_and_b32 v7, 16, v0
    v_cmp_eq_u32 s[64:65], 0, v7
    '''.strip().split('\n')
    stat += [f'v_mul_f32 {v(RL + i)}, s38, {v(STR + i)}' for i in range(16)]
    groups = []
    for p in range(66 + LAG):
        g = []
        if p % 16 == 0 and p < 64:
            j = p // 16
            g.append(lambda j=j: (A.wait(f'q{j}', 'xfw'), A('s_barrier')))
        if p < 66:
            g.append(lds_rd(buf(p), p * KB if p < 64 else L_XQ + (p - 64) * KB))
        if p >= LAG:
            q = p - LAG
            kg, t = q >> 1, q & 1
            xf = a(4 * kg, 4) if kg < 32 else v(XF, 4)
            acc = v((KT, VT)[t], 16)
            g.append(f'{MF} {acc}, {xf}, {buf(q)}, {"0" if kg == 0 else acc}')
            if t == 1 and kg + D < 32:
                g.append(lambda kg=kg: xload(kg + D))
            if t == 1 and kg in (1, 7):
                g.append(lambda j=2 + kg // 7: l0_chunk(j))
            if t == 1 and 32 <= kg + D < 40:
                g.append(lambda: Q.emit(1))
        groups.append(g)
    emit_with_fill(A, groups[:2 + LAG], [], 0)
    stamp(A)
    even_fill(A, groups[2 + LAG:20], addr)
    even_fill(A, groups[20:64], stat)
    emit_with_fill(A, groups[64:], [], 0)
    Q.upto(6)
    stamp(A)
    for i in range(0, 16, 2):
        t = T if i & 2 else XF + 8
        A(f'''
        v_pk_mul_f32 {v(t, 2)}, {v(KT + i, 2)}, {v(RL + i, 2)}
        v_pk_fma_f32 {v(KT + i, 2)}, {v(KT + i, 2)}, {v(STR + i, 2)}, s[40:41]
        v_exp_f32_e64 {v(t)}, {v(t)} clamp
        v_exp_f32_e64 {v(t + 1)}, {v(t + 1)} clamp
        v_pk_mul_f32 {v(VT + i, 2)}, {v(VT + i, 2)}, {v(STR + i, 2)}
        v_max_f32 {v(KT + i)}, s40, {v(KT + i)}
        v_max_f32 {v(KT + i + 1)}, s40, {v(KT + i + 1)}
        v_cvt_pk_bf16_f32 {v(P + 16 + i // 2)}, {v(VT + i)}, {v(VT + i + 1)}
        v_pk_add_f32 {v(KT + i, 2)}, {v(KT + i, 2)}, {v(t, 2)}
        v_cvt_pk_bf16_f32 {v(P + 8 + i // 2)}, {v(KT + i)}, {v(KT + i + 1)}
        ''')
        if i == 6:
            A(f'{MF} {v(64, 16)}, {v(P + 16, 4)}, {v(P + 8, 4)}, 0')
    D2 = 64
    A(f'{MF} {v(D2, 16)}, {v(P + 20, 4)}, {v(P + 12, 4)}, {v(D2, 16)}')
    for i in range(4, 16, 4):
        A(f'v_pk_add_f32 {v(KT, 2)}, {v(KT, 2)}, {v(KT + i, 2)}\n'
          f'v_pk_add_f32 {v(KT + 2, 2)}, {v(KT + 2, 2)}, {v(KT + i + 2, 2)}')
    A(f'v_pk_add_f32 {v(KT, 2)}, {v(KT, 2)}, {v(KT + 2, 2)}\nv_add_f32 {v(KT)}, {v(KT)}, {v(KT + 1)}')
    swap_add(A, KT, T)
    A(f'ds_write_b32 v137, {v(KT)} offset:2048')
    for i in range(8):
        A(f'v_cndmask_b32 {v(KT + 1 + i)}, {v(D2 + 8 + i)}, {v(D2 + i)}, s[64:65]')
        A(f'ds_write_b32 v136, {v(KT + 1 + i)} offset:{(8 * (i >> 2) + (i & 3)) * 64}', tok='kvw')
    A.wait('kvw', 'q4', 'q5')
    A('s_barrier')
    for w in range(4):
        A(f'ds_read_b64 {v(KT + 2 * w, 2)}, v139 offset:{w * 2176}')
        A(f'ds_read_b32 {v(KT + 8 + w)}, v143 offset:{w * 2176}')
    rq = lambda p: lds_rd(buf(p), (64 + p) * KB if p < 32 else L_XQ + 2 * KB)
    A(rq(0))
    A(rq(1))
    A(f'''
    v_pk_add_f32 {v(KT, 2)}, {v(KT, 2)}, {v(KT + 2, 2)}
    v_add_f32 {v(KT + 8)}, {v(KT + 8)}, {v(KT + 9)}
    v_pk_add_f32 {v(KT + 4, 2)}, {v(KT + 4, 2)}, {v(KT + 6, 2)}
    v_add_f32 {v(KT + 10)}, {v(KT + 10)}, {v(KT + 11)}
    v_pk_add_f32 {v(KT, 2)}, {v(KT, 2)}, {v(KT + 4, 2)}
    v_add_f32 {v(KT + 8)}, {v(KT + 8)}, {v(KT + 10)}
    buffer_store_dwordx2 {v(KT, 2)}, v138, s[8:11], s37 offen sc1
    ''')
    A(f'buffer_store_dword {v(KT + 8)}, v142, s[8:11], s37 offen sc1', tok='kvs')
    stamp(A)
    A(f's_cmp_lg_u32 {LAY}, 0\ns_cbranch_scc1 {m}_nopk')
    A(f's_and_b32 s16, {C}, 14\ns_lshl_b32 s16, s16, 8\ns_add_u32 s42, s16, {CFL}\nv_lshlrev_b32 v7, 3, v0')
    poll(A, 'v7', 's42', '2', width=2)
    A.label(m + '_nopk')
    A(f's_mul_i32 s32, {C}, {224 * KB}\ns_add_u32 s32, s32, s31\ns_add_u32 s32, s32, {WGU}\ns_add_u32 s43, {LAY}, 3')
    G = S.G = Dma(A, 'g', 's32')
    fill = [lambda i=i: woload(i) for i in range(16)] + [lambda: G.emit(1)] * CFG['w1_g']
    addr2 = f'''
    s_lshl_b32 s16, {C}, 8
    s_lshl_b32 s17, {W}, 6
    s_add_u32 s16, s16, s17
    s_add_u32 s42, s16, {CFL}
    v_and_b32 v7, 15, v0
    v_lshlrev_b32 v139, 2, v7
    v_mul_u32_u24 v136, 2176, v3
    v_lshl_add_u32 v136, v2, 4, v136
    v_lshrrev_b32 v137, 2, v0
    v_mul_u32_u24 v137, 2176, v137
    v_and_b32 v138, 3, v0
    v_lshl_add_u32 v137, v138, 3, v137
    s_lshl_b32 s17, {W}, 9
    s_add_u32 s37, s39, s17
    s_lshl_b32 s17, {W}, 5
    s_add_u32 s44, s39, s17
    s_lshr_b32 s16, {W}, 1
    s_lshl_b32 s17, s16, 6
    s_lshl_b32 s18, {W}, 9
    s_add_u32 s17, s17, s18
    s_add_u32 s17, s17, {L_KV}
    v_lshl_add_u32 v142, v2, 4, s17
    s_mul_i32 s16, s16, 1088
    s_and_b32 s17, {W}, 1
    s_lshl_b32 s17, s17, 5
    s_add_u32 s16, s16, s17
    s_add_u32 s16, s16, {L_KV + 1024}
    v_lshl_add_u32 v143, v138, 3, s16
    v_min_u32 v138, 16, v2
    v_lshlrev_b32 v138, 6, v138
    v_lshl_add_u32 v138, v3, 5, v138
    v_add_u32 v138, {L_KV}, v138
    s_lshr_b32 s16, {RB32}, 1
    s_lshl_b32 s17, s16, 7
    s_lshl_b32 s16, s16, 4
    s_add_u32 s16, s16, {C}
    s_lshl_b32 s16, s16, 12
    s_and_b32 s18, {W}, 1
    s_lshl_b32 s19, s18, 10
    s_add_u32 s16, s16, s19
    s_lshl_b32 s19, {LAY}, 21
    s_add_u32 s16, s16, s19
    s_add_u32 s45, s16, {OB}
    s_lshl_b32 s19, {C}, 1
    s_add_u32 s18, s18, s19
    s_lshl_b32 s18, s18, 2
    s_add_u32 s47, s17, s18
    s_add_u32 s46, s47, {OFL}
    s_add_u32 s47, s47, {HFL}
    '''.strip().split('\n')
    qg = []
    for p in range(33):
        g = []
        if p + 2 < 33:
            g.append(rq(p + 2))
        xf = a(4 * p, 4) if p < 32 else v(XF, 4)
        g.append(f'{MF} {v(QT, 16)}, {buf(p)}, {xf}, {"0" if p == 0 else v(QT, 16)}')
        if p == CFG['kvflag_at']:
            g.append(lambda: (A.wait('kvs'), flag(A, 's33', 's43', 'sc1')))
        if p < len(fill):
            g.append(fill[p])
        qg.append(g)
    even_fill(A, qg, addr2)
    for x in fill[33:]:
        run(A, x)
    stamp(A)
    for i in range(0, 16, 2):
        t = T if i & 2 else XF + 8
        A(f'''
        v_pk_mul_f32 {v(t, 2)}, {v(QT + i, 2)}, {v(MEAN, 2)} {BC0}
        v_pk_fma_f32 {v(QT + i, 2)}, {v(QT + i, 2)}, {v(MEAN, 2)}, s[40:41] {BC1}
        v_exp_f32_e64 {v(t)}, {v(t)} clamp
        v_exp_f32_e64 {v(t + 1)}, {v(t + 1)} clamp
        v_max_f32 {v(QT + i)}, s40, {v(QT + i)}
        v_max_f32 {v(QT + i + 1)}, s40, {v(QT + i + 1)}
        v_pk_add_f32 {v(QT + i, 2)}, {v(QT + i, 2)}, {v(t, 2)}
        v_cvt_pk_bf16_f32 {v(P + i // 2)}, {v(QT + i)}, {v(QT + i + 1)}
        ''')
    stamp(A)
    poll(A, 'v139', 's42', 's43')
    stamp(A)
    A('buffer_load_dwordx2 v[48:49], v137, s[8:11], s44 offen offset:2048 sc1')
    for i in range(8):
        A(f'buffer_load_dwordx4 {v(16 + 4 * i, 4)}, v136, s[8:11], s37 offen sc1')
        if i < 7:
            A(f's_add_u32 s37, s37, {2 * 2176}')
    G.emit(CFG['w2_g'])
    assert G.i <= 16
    for ror in (4, 8):
        for j in range(2):
            A(f'v_add_f32_dpp {v(50 + j)}, {v(48 + j)}, {v(48 + j)} row_ror:{ror} row_mask:0xf bank_mask:0xf')
        A('v_mov_b32 v48, v50\nv_mov_b32 v49, v51')
    for sw in ('16', '32'):
        A(f'v_permlane{sw}_swap_b32 v50, v48\nv_permlane{sw}_swap_b32 v51, v49\nv_pk_add_f32 v[48:49], v[50:51], v[48:49]')
        if sw == '16':
            A('v_mov_b32 v50, v48\nv_mov_b32 v51, v49')
    A('ds_write_b64 v143, v[48:49]')
    for i in range(1, 8):
        for j in (0, 2):
            A(f'v_pk_add_f32 {v(16 + j, 2)}, {v(16 + j, 2)}, {v(16 + 4 * i + j, 2)}')
    for j in range(4):
        A(f'v_mov_b32 {v(20 + j)}, {v(16 + j)}')
    for j in range(4):
        A(f'v_permlane32_swap_b32 {v(20 + j)}, {v(16 + j)}')
    for j in (0, 2):
        A(f'v_pk_add_f32 {v(16 + j, 2)}, {v(20 + j, 2)}, {v(16 + j, 2)}')
    A('ds_write_b128 v142, v[16:19]', tok='kvt')
    A.wait('kvt')
    A('s_barrier')
    for f in range(2):
        A(f'ds_read_b128 {v(16 + 8 * f, 4)}, v138 offset:{f * 1088}\n'
          f'ds_read_b128 {v(20 + 8 * f, 4)}, v138 offset:{f * 1088 + 16}')
    for f in range(2):
        k = 16 + 8 * f
        for d in range(4):
            A(f'v_cvt_pk_bf16_f32 {v(k + d)}, {v(k + 2 * d)}, {v(k + 2 * d + 1)}')
        A(f'{MF} {v(32 + 16 * f, 16)}, {v(k, 4)}, {v(P + 4 * f, 4)}, 0')
    A(f'''
    s_lshl_b32 s16, {RB64}, 7
    s_lshl_b32 s17, {W}, 5
    s_add_u32 s51, s16, s17
    s_add_u32 s55, s51, {OFL}
    s_add_u32 s51, s51, {HFL}
    v_and_b32 v7, 7, v0
    v_lshlrev_b32 v139, 2, v7
    s_add_u32 s56, {LAY}, 1
    ''')
    for f in range(2):
        d = 32 + 16 * f
        A(f'v_add_f32 {v(T)}, s40, {v(d + 8)}\nv_rcp_f32 {v(T)}, {v(T)}')
        for i in range(0, 8, 2):
            A(f'v_pk_mul_f32 {v(d + i, 2)}, {v(d + i, 2)}, {v(T, 2)} {BC0}')
        for i in range(4):
            A(f'v_cvt_pk_bf16_f32 {v(P + 8 + 4 * f + i)}, {v(d + 2 * i)}, {v(d + 2 * i + 1)}')
        A(f'buffer_store_dwordx4 {v(P + 8 + 4 * f, 4)}, v1, s[8:11], s45 offen offset:{f * 2048} {sc.o}', tok='os')
    stamp(A)
    A(f's_cmp_lg_u32 {LAY}, 0\ns_cbranch_scc1 {m}_nocs0')
    A(f'''
    s_lshl_b32 s16, {C}, 14
    s_lshl_b32 s17, {W}, 8
    s_add_u32 s16, s16, s17
    s_add_u32 s16, s16, {CSG}
    s_add_u32 s17, s16, 128
    v_lshlrev_b32 v7, 2, v2
    v_lshl_add_u32 v7, v3, 13, v7
    s_lshl_b32 s48, {W}, 11
    s_add_u32 s48, s48, {L_XG}
    s_add_u32 s49, s48, 1024
    ''')
    l0, f0 = colsum_frag(A, 16, 's16', 1024, 's48', 32)
    l1, f1 = colsum_frag(A, 24, 's17', 1024, 's49', 36)
    l0()
    l1()
    A.label(m + '_nocs0')
    G.emit(CFG['w3_g'])
    A(f'''
    s_lshl_b32 s34, {RB64}, 16
    s_lshl_b32 s17, {W}, 14
    s_add_u32 s34, s34, s17
    s_lshl_b32 s17, {LAY}, 21
    s_add_u32 s34, s34, s17
    s_add_u32 s34, s34, {OB}
    s_mul_i32 s36, {CB}, {224 * KB}
    s_mul_i32 s16, {W}, {56 * KB}
    s_add_u32 s36, s36, s16
    s_add_u32 s36, s36, {WD}
    ''')
    A.wait('os')
    flag(A, 's46', 's56', sc.f)
    stamp(A)
    A(f's_cmp_lg_u32 {LAY}, 0\ns_cbranch_scc1 {m}_nocs')
    f0()
    A(f's_cmp_eq_u32 {W}, 3\ns_cbranch_scc1 {m}_nocs')
    f1()
    A.label(m + '_nocs')


def reduce_epilogue(A, m):
    T = 88
    for sg in (3, 2, 1):
        A(f'''
        s_xor_b32 s16, {W}, {sg}
        s_mul_i32 s16, s16, {3 * 4096}
        s_add_u32 s16, s16, {L_RED + (sg - 1) * 4096}
        v_add_u32 {v(T + 4 + sg)}, s16, v1
        ''')
    A(f's_mul_i32 s16, {W}, {3 * 4096}\ns_add_u32 s16, s16, {L_RED}\nv_add_u32 v7, s16, v1\ns_mov_b32 s17, 0xffff0000')
    for d in range(8):
        A(f'v_lshlrev_b32 {v(96 + 2 * d)}, 16, {v(RES + d)}\nv_and_b32 {v(97 + 2 * d)}, s17, {v(RES + d)}')


def reduce_finish(A, m):
    T = 88
    for sg in (3, 2, 1):
        for jj in range(4):
            A(f'ds_write_b128 {v(T + 4 + sg)}, {v(ACC + 16 * sg + 4 * jj, 4)} offset:{jj * 1024}', tok='red')
    for d in range(8):
        A(f'v_pk_add_f32 {v(ACC + 2 * d, 2)}, {v(ACC + 2 * d, 2)}, {v(96 + 2 * d, 2)}')
    A.wait('red')
    A('s_barrier')
    for jj in range(4):
        for sg in range(1, 4):
            A(f'ds_read_b128 {v(ACC + 16 * sg + 4 * jj, 4)}, v7 offset:{(sg - 1) * 4096 + jj * 1024}')
    for jj in range(4):
        for sg in range(1, 4):
            for i in range(4 * jj, 4 * jj + 4, 2):
                A(f'v_pk_add_f32 {v(ACC + i, 2)}, {v(ACC + i, 2)}, {v(ACC + 16 * sg + i, 2)}')
        for d in range(2 * jj, 2 * jj + 2):
            A(f'v_cvt_pk_bf16_f32 {v(RES + d)}, {v(ACC + 2 * d)}, {v(ACC + 2 * d + 1)}')


def publish_addr(j_off):
    return f'''
    s_lshl_b32 s48, {LAY}, 22
    s_add_u32 s48, s48, {TOFF}
    s_add_u32 s48, s48, {XB + j_off * 2048 * KB}
    s_lshl_b32 s49, {LAY}, 19
    s_add_u32 s49, s49, {SOFF}
    s_add_u32 s49, s49, {SB + j_off * 256 * KB}
    s_lshl_b32 s50, {LAY}, 5
    s_add_u32 s50, s50, {16 * (j_off + 1)}
    s_lshl_b32 s42, {RB32}, 7
    s_add_u32 s42, s42, {XFL}
    v_and_b32 v138, 15, v0
    v_lshlrev_b32 v138, 2, v138
    '''


def publish_x(A, sc, window):
    A(f'''
    buffer_store_dwordx4 {v(RES, 4)}, v1, s[8:11], s48 offen {sc.x}
    buffer_store_dwordx4 {v(RES + 4, 4)}, v1, s[8:11], s48 offen offset:1024 {sc.x}
    ''')
    stats_part(A, ACC, 88, 's49', sc.x, tok='xs')
    stamp(A)
    window()
    A.wait('xs')
    flag(A, XFA, 's50', sc.f)
    stamp(A)
    poll(A, 'v138', 's42', 's50')
    stamp(A)


def k2(A, m, sc, S):
    G = S.G
    poll(A, 'v139', 's55', 's56')
    stamp(A)
    for hh in range(8):
        for r in range(2):
            A(f'buffer_load_dwordx4 {a(8 * hh + 4 * r, 4)}, {("v8", "v9")[r]}, s[8:11], s34 offen '
              f'offset:{(hh & 1) * 2048} sc1')
        if hh & 1:
            A('s_add_u32 s34, s34, 4096')
    S.wdq = list(range(32, 32 + CFG['w4_wd'])) + list(range(32)) + list(range(32 + CFG['w4_wd'], 56))
    S.wdbase = 0
    G.upto(6)
    wdload(A, S, CFG['w4_wd'])
    A(publish_addr(1))
    reduce_epilogue(A, m)
    for hh in range(8):
        for r, c in ((1, 1), (1, 0), (0, 1), (0, 0)):
            t = v(ACC + 16 * (2 * r + c), 16)
            A(f'{MF} {t}, {a(128 + 8 * hh + 4 * c, 4)}, {a(8 * hh + 4 * r, 4)}, {"0" if hh == 0 else t}')
        if hh == 0:
            stamp(A)
    stamp(A)
    reduce_finish(A, m)

    def w5():
        A('s_barrier')
        G.emit(CFG['w5_g'])
        wdload(A, S, CFG['w5_wd'])
        A(f'''
        s_lshl_b32 s34, {LAY}, 22
        s_lshl_b32 s16, {RB32}, 15
        s_add_u32 s34, s34, s16
        s_add_u32 s34, s34, {X[1]}
        s_lshl_b32 s35, {LAY}, 19
        s_lshl_b32 s16, {RB32}, 12
        s_add_u32 s35, s35, s16
        s_add_u32 s35, s35, {ST[1]}
        s_lshr_b32 s16, {RB32}, 1
        s_mul_i32 s16, s16, 112
        s_lshr_b32 s17, {C}, 2
        s_mul_i32 s17, s17, 28
        s_add_u32 s16, s16, s17
        s_and_b32 s17, {C}, 3
        s_add_u32 s16, s16, s17
        s_lshl_b32 s16, s16, 1
        s_and_b32 s17, {W}, 1
        s_add_u32 s16, s16, s17
        s_lshl_b32 s16, s16, 10
        s_mul_i32 s17, {LAY}, {7168 * KB}
        s_add_u32 s16, s16, s17
        s_add_u32 s52, s16, {HB}
        s_lshl_b32 s53, {LAY}, 1
        s_add_u32 s53, s53, 1
        s_add_u32 s54, s53, 1
        s_mul_i32 s37, {RB64}, {224 * KB}
        s_mul_i32 s16, {W}, {56 * KB}
        s_add_u32 s37, s37, s16
        s_add_u32 s37, s37, s17
        s_add_u32 s37, s37, {HB}
        ''')
    publish_x(A, sc, w5)


def hload(A, S, st):
    while S.wdq and min(S.wdq) < 2 * st + 2:
        S.wdq.sort()
        wdload(A, S)
    for r in range(2):
        A(f'buffer_load_dwordx4 {a(8 * (st % 16) + 4 * r, 4)}, {("v8", "v9")[r]}, s[8:11], s37 offen '
          f'offset:{(st & 1) * 2048} sc1')
    if st & 1:
        A('s_add_u32 s37, s37, 4096')


def k3(A, m, sc, S):
    WB, STR, MEAN, RSTD, T, XF, E = 88, 120, 136, 137, 156, 140, 144
    G = S.G
    D = CFG['xdepth']

    def xload(kg):
        A(f'buffer_load_dwordx4 {a(4 * kg, 4)}, v1, s[8:11], s34 offen offset:{(kg & 3) * 1024} sc1')
        if kg & 3 == 3:
            A('s_add_u32 s34, s34, 4096')
    for kg in range(D):
        xload(kg)
        if kg == 3:
            stats_load(A, STR, 's35')
    items = []
    for kg in range(32):
        for t in range(3):
            items.append((t, kg, (3 * kg + t) * KB, 3 * kg + t))
    for t in range(3):
        items.append((t, 32, L_XG + t * KB, None))
    for t in range(3, 7):
        for kg in range(32):
            p = 32 * t + kg
            items.append((t, kg, (p * KB) % RING, p))
        items.append((t, 32, L_XG + t * KB, None))
    N = len(items)
    accreg = lambda t: ACC + 16 * (t if t < 4 else t - 4)
    NB, LAG = 8, 4
    buf = lambda i: v(WB + 4 * (i % NB), 4)

    def epi(t):
        g = accreg(t)
        pk = 120 + 4 * (t & 1)
        L = []
        for i0 in range(0, 8, 4):
            R = range(i0, i0 + 4)
            L += [f'v_mul_f32 {v(E + i)}, {v(MEAN)}, {v(g + i)}' for i in R]
            L += [f'v_exp_f32 {v(E + i)}, {v(E + i)}' for i in R]
            L += [f'v_fma_f32 {v(E + i)}, {v(E + i)}, {v(RSTD)}, {v(RSTD)}' for i in R]
            L += [f'v_rcp_f32 {v(E + i)}, {v(E + i)}' for i in R]
            L += [f'v_mul_f32 {v(E + i)}, {v(E + i)}, {v(g + 8 + i)}' for i in R]
            L += [f'v_cvt_pk_bf16_f32 {v(pk + i // 2)}, {v(E + i)}, {v(E + i + 1)}' for i in R[::2]]
        L.append(lambda: (A(f'buffer_store_dwordx4 {v(pk, 4)}, v1, s[8:11], s52 offen {sc.h}', tok=f'h{t}'),
                          A(f's_add_u32 s52, s52, {8 * KB}')))
        return L
    stat = stats_combine(STR, MEAN, RSTD, T, XF)
    stat += [f'v_mul_f32 {v(MEAN)}, {f2u(-LOG2E)}, {v(RSTD)}', f'v_rcp_f32 {v(RSTD)}, {v(RSTD)}']
    mem = {}

    def spread(lo, hi, fns):
        for k, fn in enumerate(fns):
            mem.setdefault(lo + (hi - lo) * k // max(len(fns), 1), []).append(fn)
    dma1 = lambda: G.emit(1)
    wd1 = lambda: wdload(A, S)
    have = G.i
    kw = CFG['k3_wd']
    spread(4, 24, [dma1] * (36 - have))
    spread(36, 90, [dma1] * 4 + [wd1] * kw[0])
    spread(100, 130, [dma1] * 8 + [wd1] * kw[1])
    spread(133, 163, [dma1] * 8 + [wd1] * kw[2])
    spread(166, 196, [wd1] * kw[3])
    he = CFG['hearly']
    spread(199, 215, [wd1] * kw[4])
    mem.setdefault(205, []).append(lambda: (A.wait('h3'), flag(A, 's47', 's53', sc.f)))
    if he:
        mem.setdefault(216, []).append(lambda: presample(A, 'v158', 'v139', 's51'))
    groups = []
    for i in range(N + LAG):
        g = []
        if i < N:
            t, kg, ad, p = items[i]
            if p == 0:
                g.append(lambda: (A.wait(*[f'g{q}' for q in range(6)], 'xfw'), A('s_barrier')))
            elif p == 30:
                g.append('s_barrier')
            elif p is not None and p >= 96 and p % 32 == 0:
                g.append(lambda j=p // 16: (A.wait(f'g{j}', f'g{j + 1}'), A('s_barrier')))
            g.append(lds_rd(buf(i), ad))
        if i >= LAG:
            q = i - LAG
            t, kg, ad, p = items[q]
            if q % 2 == 0 and i + 1 < N and q > 0:
                g.append(f's_waitcnt lgkmcnt({LAG - 1})')
            xf = a(4 * kg, 4) if kg < 32 else v(XF, 4)
            acc = v(accreg(t), 16)
            g.append(f'{MF} {acc}, {buf(q)}, {xf}, {"0" if kg == 0 else acc}')
            if q < 96 and t == 2 and kg + D < 32:
                g.append(lambda kg=kg: xload(kg + D))
            g += mem.get(q, [])
        groups.append(g)
    b = lambda t: 99 + 33 * t + LAG + 1
    emit_with_fill(A, groups[:3 + LAG], [], 0)
    stamp(A)
    emit_with_fill(A, groups[3 + LAG:30], [], 0)
    even_fill(A, groups[30:92], stat)
    emit_with_fill(A, groups[92:b(0)], [], 0)
    stamp(A)
    e = [epi(t) for t in range(7)]
    hf = len(e[0]) // 2
    even_fill(A, groups[b(0):b(1) - 2], e[0] + e[1][:hf])
    emit_with_fill(A, groups[b(1) - 2:b(1)], [], 0)
    even_fill(A, groups[b(1):b(2) - 2], e[1][hf:] + e[2])
    emit_with_fill(A, groups[b(2) - 2:b(2)], [], 0)
    even_fill(A, groups[b(2):b(3)], e[3] + e[4][:hf])
    even_fill(A, groups[b(3):], e[4][hf:] + e[5])
    assert G.i == 56, G.i
    stamp(A)
    if he:
        poll(A, 'v139', 's51', 's53', pre='v158')
        for st in range(he):
            hload(A, S, st)
    for x in e[6]:
        run(A, x)
    stamp(A)


def k4(A, m, sc, S):
    D = CFG['hdepth']
    he = CFG['hearly']
    if not he:
        poll(A, 'v139', 's51', 's53')
    for st in range(he, D):
        hload(A, S, st)
    A('s_barrier')
    A.wait('h6')
    flag(A, 's47', 's54', sc.f)
    stamp(A)
    Q = wqkv_start(A)
    nq = CFG['k4_q']

    def l0_q(n):
        lab = A.uid('l0')
        A(f's_cmp_lg_u32 {LAY}, 0\ns_cbranch_scc1 {lab}')
        Q.emit(n)
        A.label(lab)
    for st in range(28):
        if st == 26:
            A(publish_addr(2))
            reduce_epilogue(A, m)
        for r, c in ((1, 1), (1, 0), (0, 1), (0, 0)):
            t = v(ACC + 16 * (2 * r + c), 16)
            A(f'{MF} {t}, {wd_reg(2 * st + c)}, {a(8 * (st % 16) + 4 * r, 4)}, {"0" if st == 0 else t}')
        if st == 0:
            stamp(A)
        if st + D == 13:
            presample(A, 'v158', 'v139', 's51')
        if st + D == 16:
            stamp(A)
            poll(A, 'v139', 's51', 's54', pre='v158')
            stamp(A)
        if st + D < 28:
            hload(A, S, st + D)
            if nq and st % 4 == 3 and Q.i < nq:
                l0_q(min(2, nq - Q.i))
        if st + D == 28:
            l0_q(CFG['w7_q'] + nq - Q.i)
    stamp(A)
    reduce_finish(A, m)
    A(f's_cmp_lg_u32 {LAY}, 0\ns_cbranch_scc1 {m}_final')
    publish_x(A, sc, lambda: Q.upto(4))
    stamp(A, True)
    n = NST[0]
    stamp_flush(A, 1)
    A(f's_mov_b32 {LAY}, 1\ns_branch {m}')
    A.label(m + '_final')
    for f in range(2):
        r = RES + 4 * f
        A(f'v_permlane32_swap_b32 {v(r)}, {v(r + 2)}\nv_permlane32_swap_b32 {v(r + 1)}, {v(r + 3)}')
    A(f'''
    s_mov_b64 s[12:13], s[60:61]
    s_mov_b32 s14, {2048 * KB}
    s_mov_b32 s15, 0x20000
    v_lshlrev_b32 v7, 10, v2
    v_lshl_add_u32 v7, v3, 4, v7
    buffer_store_dwordx4 {v(RES, 4)}, v7, s[12:15], s57 offen
    buffer_store_dwordx4 {v(RES + 4, 4)}, v7, s[12:15], s57 offen offset:32
    ''')
    if CFG['diag']:
        NST[0] = n - 2
        A('s_waitcnt vmcnt(0)')
        stamp(A)
        stamp(A, True)
        stamp_flush(A, 2)
    A('s_endpgm')


def body(A, m, sc):
    S = St()
    A.label(m)
    stamp(A)
    k1(A, m, sc, S)
    k2(A, m, sc, S)
    k3(A, m, sc, S)
    k4(A, m, sc, S)


def build(cfg=None):
    if cfg:
        CFG.update(cfg)
    A = Asm()
    A('.p2align 8')
    A.label(KN)
    p0(A)
    from types import SimpleNamespace as NS
    body(A, 'L_fast', NS(**CFG.get('sc', dict(o='sc1', x='sc1', h='sc1', f=''))))
    body(A, 'L_safe', NS(o='sc1', x='sc1', h='sc1', f='sc1'))
    A.label('L_end')
    A('s_endpgm')
    mx = A.maxreg()
    assert mx['v'] < 256 and mx['a'] < 256 and mx['s'] < 100, mx
    txt = A.finalize([KN])
    head = f'; @launch grid=(256,1,1) block=(256,1,1) lds={LDS}\n'
    head += f'.amdgcn_target "amdgcn-amd-amdhsa--gfx950"\n.text\n.globl {KN}\n.type {KN},@function\n'
    tail = f'''
.section .rodata,"a"
.p2align 6
.amdhsa_kernel {KN}
  .amdhsa_next_free_vgpr 512
  .amdhsa_next_free_sgpr 100
  .amdhsa_accum_offset 256
  .amdhsa_group_segment_fixed_size 0
  .amdhsa_kernarg_size 80
  .amdhsa_user_sgpr_count 2
  .amdhsa_user_sgpr_kernarg_segment_ptr 1
  .amdhsa_system_sgpr_workgroup_id_x 1
  .amdhsa_float_denorm_mode_32 3
.end_amdhsa_kernel
'''
    return head + txt + tail


if __name__ == '__main__':
    import json
    out = sys.argv[1] if len(sys.argv) > 1 else f'cdna_kernels/{NAME}.s'
    cfg = json.loads(sys.argv[2]) if len(sys.argv) > 2 else None
    open(out, 'w').write(build(cfg))
    print('wrote', out)
```

```python
import sys, math
from asmlib import Asm, v, a, s, f2u

KB = 1024
NAME = 'interleave_layers__linear_attn_block__glu_gated_glu__prompt'
KN = NAME + '_kernel'
off = 0


def alloc(n):
    global off
    o = off
    off += (n + 4095) // 4096 * 4096
    return o


WQKV = alloc(16 * 96 * KB)
WO = alloc(512 * KB)
WGU = alloc(16 * 224 * KB)
WD = alloc(1792 * KB)
XB = alloc(4 * 2048 * KB)
X = [XB + j * 2048 * KB for j in range(4)]
SB = alloc(4 * 256 * KB)
ST = [SB + j * 256 * KB for j in range(4)]
OB = alloc(2 * 2048 * KB)
HB = alloc(2 * 7168 * KB)
KVS = 256 * 2176
KVP = alloc(2 * KVS)
CSQ = alloc(256 * 384)
CSG = alloc(256 * 1024)
FL = alloc(20 * KB)
XFL, OFL, HFL, CFL = FL, FL + 8 * KB, FL + 12 * KB, FL + 16 * KB
DIAG = 128 << 20
WS_BYTES = 268435456
LOG2E = math.log2(math.e)
MF = 'v_mfma_f32_32x32x16_bf16'

RING = 144 * KB
L_RED = 96 * KB
L_XQ = 144 * KB
L_XG = 147 * KB
L_RS = 154 * KB
L_KV = 155 * KB
LDS = 160 * KB

W, RB, C, RB32, RB64, CB, LAY, XCC = 's20', 's21', 's22', 's23', 's24', 's25', 's26', 's27'
TOFF, SOFF, XFA = 's28', 's29', 's30'
ACC, RES = 16, 80
CFG = dict(diag=0, force_safe=0, xdepth=8, hdepth=10, xmap=8,
           w1_g=4, w2_g=4, w3_g=4, w4_wd=0, w5_g=8, w5_wd=0, k3_wd=(0, 3, 3, 11, 8), kvflag_at=20,
           k4_q=12, w7_q=8, hearly=6, p0b_late=1, nt='nt', xpre=1, w4_g_in=1, fin_sc='', k3stamps=0)
NST = [0]


def stamp(A, real=False):
    if not CFG['diag']:
        return
    i = NST[0]
    NST[0] += 1
    A(f'{"s_memrealtime" if real else "s_memtime"} s[66:67]\ns_waitcnt lgkmcnt(0)\nv_writelane_b32 v15, s66, {i}')


def stamp_flush(A, seg):
    if not CFG['diag']:
        return
    A(f'''
    s_lshl_b32 s16, s2, 2
    s_add_u32 s16, s16, {W}
    s_mul_i32 s16, s16, 3
    s_add_u32 s16, s16, {seg}
    s_lshl_b32 s16, s16, 8
    s_add_u32 s16, s16, {DIAG}
    v_lshlrev_b32 v7, 2, v0
    buffer_store_dword v15, v7, s[8:11], s16 offen
    v_mov_b32 v15, 0
    ''')
    NST[0] = 0


def swap_add(A, r, t):
    A(f'''
    v_mov_b32 {v(t)}, {v(r)}
    v_permlane32_swap_b32 {v(t)}, {v(r)}
    v_add_f32 {v(r)}, {v(t)}, {v(r)}
    ''')


def stats_part(A, f, t, soff, sc, tok=None):
    A(f'v_pk_add_f32 {v(t, 2)}, {v(f, 2)}, {v(f + 2, 2)}')
    A(f'v_pk_add_f32 {v(t + 2, 2)}, {v(f + 4, 2)}, {v(f + 6, 2)}')
    for i in range(8, 16, 4):
        A(f'v_pk_add_f32 {v(t, 2)}, {v(t, 2)}, {v(f + i, 2)}')
        A(f'v_pk_add_f32 {v(t + 2, 2)}, {v(t + 2, 2)}, {v(f + i + 2, 2)}')
    A(f'v_pk_add_f32 {v(t, 2)}, {v(t, 2)}, {v(t + 2, 2)}')
    A(f'v_add_f32 {v(t)}, {v(t)}, {v(t + 1)}')
    swap_add(A, t, t + 2)
    A(f'v_mul_f32 {v(t)}, {f2u(1 / 32)}, {v(t)}')
    for i in range(0, 16, 2):
        A(f'v_pk_add_f32 {v(f + i, 2)}, {v(f + i, 2)}, {v(t, 2)} op_sel_hi:[1,0] neg_lo:[0,1] neg_hi:[0,1]')
    A(f'v_pk_mul_f32 {v(t + 2, 2)}, {v(f, 2)}, {v(f, 2)}')
    A(f'v_pk_mul_f32 {v(f, 2)}, {v(f + 2, 2)}, {v(f + 2, 2)}')
    for i in range(4, 16, 4):
        A(f'v_pk_fma_f32 {v(t + 2, 2)}, {v(f + i, 2)}, {v(f + i, 2)}, {v(t + 2, 2)}')
        A(f'v_pk_fma_f32 {v(f, 2)}, {v(f + i + 2, 2)}, {v(f + i + 2, 2)}, {v(f, 2)}')
    A(f'v_pk_add_f32 {v(t + 2, 2)}, {v(t + 2, 2)}, {v(f, 2)}')
    A(f'v_add_f32 {v(t + 1)}, {v(t + 2)}, {v(t + 3)}')
    swap_add(A, t + 1, t + 2)
    A(f'buffer_store_dwordx2 {v(t, 2)}, v12, s[8:11], {soff} offen {sc}', tok=tok)


def stats_load(A, dst, soff):
    for q in range(8):
        A(f'buffer_load_dwordx2 {v(dst + 2 * q, 2)}, v4, s[8:11], {soff} offen offset:{q * 256} sc1')


def stats_combine(r, mean, rstd, t, xf):
    L = []
    L.append(f'v_add_f32 {v(mean)}, {v(r)}, {v(r + 2)}')
    L.append(f'v_add_f32 {v(rstd)}, {v(r + 1)}, {v(r + 3)}')
    for q in range(2, 8):
        L.append(f'v_add_f32 {v(mean)}, {v(mean)}, {v(r + 2 * q)}')
        L.append(f'v_add_f32 {v(rstd)}, {v(rstd)}, {v(r + 2 * q + 1)}')
    L += [f'v_mov_b32 {v(t)}, {v(mean)}',
          f'v_permlane32_swap_b32 {v(t)}, {v(mean)}',
          f'v_add_f32 {v(mean)}, {v(t)}, {v(mean)}',
          f'v_mul_f32 {v(mean)}, {f2u(1 / 16)}, {v(mean)}']
    for q in range(8):
        L.append(f'v_sub_f32 {v(r + 2 * q)}, {v(r + 2 * q)}, {v(mean)}')
    L.append(f'v_mul_f32 {v(t)}, {v(r)}, {v(r)}')
    for q in range(1, 8):
        L.append(f'v_fmac_f32 {v(t)}, {v(r + 2 * q)}, {v(r + 2 * q)}')
    L += [f'v_fmamk_f32 {v(rstd)}, {v(t)}, {f2u(32.0)}, {v(rstd)}',
          f'v_mov_b32 {v(t)}, {v(rstd)}',
          f'v_permlane32_swap_b32 {v(t)}, {v(rstd)}',
          f'v_add_f32 {v(rstd)}, {v(t)}, {v(rstd)}',
          f'v_mov_b32 {v(t)}, {f2u(1e-5)}',
          f'v_fmamk_f32 {v(rstd)}, {v(rstd)}, {f2u(1 / 512)}, {v(t)}',
          f'v_rsq_f32 {v(rstd)}, {v(rstd)}',
          f'v_sub_f32 {v(t)}, 0, {v(mean)}',
          f'v_cvt_pk_bf16_f32 {v(xf + 1)}, {v(t)}, 0',
          f'v_lshlrev_b32 {v(t + 1)}, 16, {v(xf + 1)}',
          f'v_sub_f32 {v(t + 1)}, {v(t)}, {v(t + 1)}',
          f'v_cvt_pk_bf16_f32 {v(xf)}, {v(t)}, {v(t + 1)}',
          f'v_mov_b32 {v(xf + 3)}, 0',
          f'v_mov_b32 {v(xf + 2)}, 0']
    return L


def run(A, x):
    x() if callable(x) else A(x)


def emit_with_fill(A, main, fill, per):
    fill = list(fill)
    k = 0
    for g in main:
        for x in g:
            run(A, x)
        for _ in range(per):
            if k < len(fill):
                run(A, fill[k])
                k += 1
    for x in fill[k:]:
        run(A, x)


def poll(A, vaddr, soff, val, width=1, srd='s[8:11]', pre=None):
    lab = A.uid('poll')
    if pre:
        A(f'v_cmp_gt_u32 vcc, {val}, {pre}\ns_cbranch_vccz {lab}_x')
    A('s_mov_b32 s58, 0')
    A.label(lab)
    A(f's_add_u32 s58, s58, 1\ns_cmp_gt_u32 s58, 0x200000\ns_cbranch_scc1 {lab}_x')
    if width == 1:
        A(f'buffer_load_dword {pre or "v14"}, {vaddr}, {srd}, {soff} offen sc1')
    else:
        A(f'buffer_load_dwordx2 v[140:141], {vaddr}, {srd}, {soff} offen sc1\nv_min_u32 v14, v140, v141')
    A(f'v_cmp_gt_u32 vcc, {val}, {pre or "v14"}\ns_cbranch_vccnz {lab}')
    A.label(lab + '_x')


def presample(A, reg, vaddr, soff, srd='s[8:11]'):
    A(f'buffer_load_dword {reg}, {vaddr}, {srd}, {soff} offen sc1')


def even_fill(A, main, fill):
    fill = list(fill)
    k, n = 0, len(main)
    for i, g in enumerate(main):
        for x in g:
            run(A, x)
        while k < len(fill) * (i + 1) // n:
            run(A, fill[k])
            k += 1


def flag(A, addr, val, sc):
    A(f'''
    v_mov_b32 v14, {val}
    s_mov_b64 exec, 1
    buffer_store_dword v14, v13, s[8:11], {addr} offen {sc}
    s_mov_b64 exec, -1
    ''')


def arrive(A, off):
    lab = A.uid('arr')
    A(f'''
    s_barrier
    s_cmp_lg_u32 {W}, 0
    s_cbranch_scc1 {lab}
    v_mov_b32 v14, 1
    s_mov_b64 exec, 1
    buffer_atomic_add v14, v13, s[8:11], s33 offen offset:{off} sc1
    s_mov_b64 exec, -1
    ''')
    A.label(lab)


def lds_rd(dst, ad):
    return f'ds_read_b128 {dst}, {("v1", "v5", "v6")[ad >> 16]} offset:{ad & 65535}'


def dma_chunk(A, soff, slot, tok):
    A(f's_add_u32 m0, s31, {slot * 16 * KB}')
    for q in range(4):
        A(f'buffer_load_dwordx4 v1, s[8:11], {soff} offen offset:{q * 1024} sc1 lds', tok=tok)
    A(f's_add_u32 {soff}, {soff}, {16 * KB}')


class Dma:
    def __init__(self, A, name, soff, nslots=9):
        self.A, self.name, self.soff, self.i, self.ns = A, name, soff, 0, nslots

    def one(self):
        j, q = divmod(self.i, 4)
        A = self.A
        A(f's_add_u32 m0, s31, {(j % self.ns) * 16 * KB}')
        A(f'buffer_load_dwordx4 v1, s[8:11], {self.soff} offen offset:{q * 1024} sc1 lds', tok=f'{self.name}{j}')
        if q == 3:
            A(f's_add_u32 {self.soff}, {self.soff}, {16 * KB}')
        self.i += 1

    def emit(self, n, fresh=True):
        for k in range(n):
            j, q = divmod(self.i, 4)
            if (k == 0 and fresh) or q == 0:
                self.one()
            else:
                self.A(f'buffer_load_dwordx4 v1, s[8:11], {self.soff} offen offset:{q * 1024} sc1 lds',
                       tok=f'{self.name}{j}')
                if q == 3:
                    self.A(f's_add_u32 {self.soff}, {self.soff}, {16 * KB}')
                self.i += 1

    def upto(self, chunk):
        self.emit(4 * chunk - self.i)


def colsum_frag(A, src, soff, stride, ldsaddr, t):
    def load():
        for q in range(8):
            if q * stride < 4096:
                A(f'buffer_load_dword {v(src + q)}, v7, s[8:11], {soff} offen offset:{q * stride} sc1')
            else:
                if (q - 1) * stride < 4096:
                    A(f's_add_u32 s19, {soff}, {q * stride}')
                    q0 = q
                A(f'buffer_load_dword {v(src + q)}, v7, s[8:11], s19 offen offset:{(q - q0) * stride} sc1')

    def fin():
        for q in range(1, 8):
            A(f'v_add_f32 {v(src)}, {v(src)}, {v(src + q)}')
        swap_add(A, src, src + 1)
        A(f'''
        v_cvt_pk_bf16_f32 {v(t)}, {v(src)}, {v(src)}
        v_lshlrev_b32 {v(src + 1)}, 16, {v(t)}
        v_sub_f32 {v(src + 1)}, {v(src)}, {v(src + 1)}
        v_cvt_pk_bf16_f32 {v(t + 1)}, {v(src + 1)}, 0
        v_cmp_eq_u32 vcc, 0, v3
        v_mov_b32 {v(t + 2)}, 0
        v_mov_b32 {v(t + 3)}, 0
        v_cndmask_b32 {v(t)}, 0, {v(t)}, vcc
        v_cndmask_b32 {v(t + 1)}, 0, {v(t + 1)}, vcc
        v_add_u32 {v(src + 2)}, {ldsaddr}, v1
        ''')
        A(f'ds_write_b128 {v(src + 2)}, {v(t, 4)}', tok='xfw')
    return load, fin


def p0(A):
    A(f'''
    s_cmp_ge_u32 s2, 256
    s_cbranch_scc1 L_end
    s_load_dwordx4 s[60:63], s[0:1], 56
    s_load_dwordx2 s[8:9], s[0:1], 72
    s_load_dwordx4 s[32:35], s[0:1], 0
    s_load_dwordx2 s[40:41], s[0:1], 16
    s_load_dwordx4 s[44:47], s[0:1], 32
    s_load_dwordx2 s[52:53], s[0:1], 48
    ''')
    if CFG['diag']:
        A('v_mov_b32 v15, 0')
    A(f'''
    v_lshrrev_b32 v1, 6, v0
    v_and_b32 v0, 63, v0
    v_readfirstlane_b32 {W}, v1
    v_lshlrev_b32 v1, 4, v0
    s_getreg_b32 {XCC}, hwreg(HW_REG_XCC_ID, 0, 4)
    s_mov_b32 s10, {WS_BYTES}
    s_mov_b32 s11, 0x20000
    s_and_b32 s16, s2, 7
    s_lshr_b32 s17, s2, 3
    ''')
    if CFG['xmap'] == 8:
        A(f's_lshl_b32 s16, s16, 1\ns_lshr_b32 s18, s17, 4\ns_add_u32 {RB}, s16, s18\ns_and_b32 {C}, s17, 15')
    else:
        A(f's_and_b32 s18, s16, 3\ns_lshl_b32 s18, s18, 2\ns_and_b32 s19, s17, 3\ns_add_u32 {RB}, s18, s19\n'
          f's_lshr_b32 s16, s16, 2\ns_lshl_b32 s16, s16, 3\ns_lshr_b32 s17, s17, 2\ns_add_u32 {C}, s16, s17')
    A(f'''
    s_lshl_b32 {RB32}, {RB}, 2
    s_add_u32 {RB32}, {RB32}, {W}
    s_lshl_b32 {RB64}, {RB}, 1
    s_and_b32 s16, {C}, 1
    s_add_u32 {RB64}, {RB64}, s16
    s_lshr_b32 {CB}, {C}, 1
    s_lshr_b32 s16, {W}, 1
    s_and_b32 s17, {W}, 1
    s_lshl_b32 s18, {RB64}, 1
    s_add_u32 s18, s18, s16
    s_lshl_b32 s19, {CB}, 1
    s_add_u32 s19, s19, s17
    s_lshl_b32 {TOFF}, s18, 4
    s_add_u32 {TOFF}, {TOFF}, s19
    s_lshl_b32 {SOFF}, {TOFF}, 8
    s_lshl_b32 {TOFF}, {TOFF}, 11
    s_lshl_b32 {XFA}, s18, 7
    s_lshl_b32 s56, s19, 2
    s_add_u32 {XFA}, {XFA}, s56
    s_add_u32 {XFA}, {XFA}, {XFL}
    s_lshl_b32 s57, s18, 15
    s_lshl_b32 s56, s19, 6
    s_add_u32 s57, s57, s56
    s_lshl_b32 s31, {W}, 12
    s_lshl_b32 s16, s16, 10
    s_lshl_b32 s17, s17, 10
    v_add_u32 v8, s16, v1
    v_xor_b32 v9, 0x400, v8
    v_add_u32 v10, s17, v1
    v_xor_b32 v11, 0x400, v10
    v_and_b32 v2, 31, v0
    v_lshrrev_b32 v3, 5, v0
    v_lshlrev_b32 v12, 3, v2
    v_lshl_add_u32 v4, v3, 11, v12
    v_add_u32 v5, 0x10000, v1
    v_add_u32 v6, 0x20000, v1
    v_mov_b32 v13, 0
    s_mov_b32 {LAY}, 0
    v_lshlrev_b32 v16, 10, v2
    v_lshl_add_u32 v16, v3, 4, v16
    v_lshrrev_b32 v17, 2, v0
    v_and_b32 v18, 3, v0
    v_lshlrev_b32 v18, 4, v18
    v_mul_u32_u24 v19, 3072, v17
    v_add_u32 v19, v19, v18
    v_mul_u32_u24 v20, 3584, v17
    v_add_u32 v20, v20, v18
    v_lshl_add_u32 v21, v17, 10, v18
    s_min_u32 s59, {W}, 2
    s_waitcnt lgkmcnt(0)
    ''')
    stamp(A, True)
    stamp(A)
    A(f'''
    s_cmp_lg_u32 s2, 0
    s_cbranch_scc1 L_noclr0
    v_mov_b32 v24, 0
    v_mov_b32 v25, 0
    v_mov_b32 v26, 0
    v_mov_b32 v27, 0
    s_mul_i32 s16, {W}, {5 * KB}
    s_add_u32 s16, s16, {FL}
    buffer_store_dwordx4 v[24:27], v1, s[8:11], s16 offen sc1
    buffer_store_dwordx4 v[24:27], v1, s[8:11], s16 offen offset:1024 sc1
    buffer_store_dwordx4 v[24:27], v1, s[8:11], s16 offen offset:2048 sc1
    buffer_store_dwordx4 v[24:27], v1, s[8:11], s16 offen offset:3072 sc1
    s_add_u32 s16, s16, 4096
    ''')
    A('buffer_store_dwordx4 v[24:27], v1, s[8:11], s16 offen sc1', tok='clr')
    A.label('L_noclr0')
    A(f'''
    s_mov_b64 s[36:37], s[34:35]
    s_mov_b32 s34, {2048 * KB}
    s_mov_b32 s35, 0x20000
    s_mov_b32 s38, {1536 * KB}
    s_mov_b32 s39, 0x20000
    s_mov_b32 s42, {512 * KB}
    s_mov_b32 s43, 0x20000
    s_mov_b64 s[48:49], s[46:47]
    s_mov_b32 s46, {1792 * KB}
    s_mov_b32 s47, 0x20000
    s_mov_b32 s50, {1792 * KB}
    s_mov_b32 s51, 0x20000
    s_mov_b32 s54, {1792 * KB}
    s_mov_b32 s55, 0x20000
    s_mov_b64 s[12:13], s[62:63]
    s_mov_b32 s14, 256
    s_mov_b32 s15, 0x20000
    buffer_load_dwordx4 {v(RES, 4)}, v16, s[32:35], s57 offen {CFG['nt']}
    buffer_load_dwordx4 {v(RES + 4, 4)}, v16, s[32:35], s57 offen offset:32 {CFG['nt']}
    s_mul_i32 s56, {W}, {9 * KB}
    s_add_u32 s56, s56, {L_RED}
    ''')
    A(f'''
    s_mul_i32 s16, {RB}, {32 * 3072}
    s_lshl_b32 s17, s59, 10
    s_add_u32 s16, s16, s17
    s_lshl_b32 s17, {C}, 6
    s_add_u32 s16, s16, s17
    s_mov_b32 m0, s56
    ''')
    A(f'buffer_load_dwordx4 v19, s[36:39], s16 offen {CFG["nt"]} lds')
    A(f's_add_u32 s16, s16, {16 * 3072}\ns_add_u32 m0, s56, 1024')
    A(f'buffer_load_dwordx4 v19, s[36:39], s16 offen {CFG["nt"]} lds', tok='pa')
    A('s_cmp_lg_u32 s2, 0\ns_cbranch_scc1 L_noclr')
    A.wait('clr')
    A(f'''
    s_lshl_b32 s16, {W}, 2
    v_mov_b32 v14, 1
    s_mov_b64 exec, 1
    buffer_store_dword v14, v13, s[12:15], s16 offen sc1
    s_mov_b64 exec, -1
    ''')
    A.label('L_noclr')
    def p0b_loads():
        A(f'''
    s_mul_i32 s16, {RB}, {32 * 3584}
    s_mul_i32 s17, {C}, 224
    s_add_u32 s16, s16, s17
    s_lshl_b32 s17, {W}, 6
    s_add_u32 s16, s16, s17
    ''')
        for u in range(2):
            A(f's_add_u32 m0, s56, {(2 + 2 * u) * KB}')
            A(f'buffer_load_dwordx4 v20, s[44:47], s16 offen {CFG["nt"]} lds')
            A(f's_add_u32 m0, s56, {(3 + 2 * u) * KB}')
            A(f'buffer_load_dwordx4 v20, s[48:51], s16 offen {CFG["nt"]} lds')
            if u == 0:
                A(f's_add_u32 s16, s16, {16 * 3584}')
        A(f'''
    s_lshl_b32 s16, {RB64}, 14
    s_lshl_b32 s17, {CB}, 7
    s_add_u32 s16, s16, s17
    s_and_b32 s18, {W}, 1
    s_lshl_b32 s18, s18, 6
    s_add_u32 s16, s16, s18
    s_add_u32 m0, s56, {6 * KB}
    ''')
        A(f'buffer_load_dwordx4 v21, s[40:43], s16 offen {CFG["nt"]} lds')
        A(f'''
    s_and_b32 s16, {C}, 1
    s_lshl_b32 s16, s16, 2
    s_add_u32 s16, s16, {W}
    s_min_u32 s64, s16, 6
    s_mul_i32 s16, {RB}, 7
    s_add_u32 s16, s16, s64
    s_lshl_b32 s16, s16, 14
    s_add_u32 s16, s16, s17
    s_add_u32 m0, s56, {7 * KB}
    ''')
        A(f'buffer_load_dwordx4 v21, s[52:55], s16 offen {CFG["nt"]} lds')
        A(f's_add_u32 s16, s16, 64\ns_add_u32 m0, s56, {8 * KB}')
        A(f'buffer_load_dwordx4 v21, s[52:55], s16 offen {CFG["nt"]} lds', tok='pb')
    A('v_and_b32 v25, 3, v0\nv_lshlrev_b32 v25, 2, v25')
    if not CFG['p0b_late']:
        p0b_loads()
    A(f'''
    v_mov_b32 v28, -1
    v_mov_b32 v29, -1
    s_lshl_b32 s16, {C}, 4
    s_add_u32 s16, s16, {RB}
    s_mul_i32 s16, s16, 2176
    s_mul_i32 s17, {W}, 544
    s_add_u32 s16, s16, s17
    s_add_u32 s16, s16, {KVP}
    s_add_u32 s17, s16, {KVS}
    v_lshlrev_b32 v30, 3, v0
    v_and_b32 v31, 7, v0
    v_lshlrev_b32 v31, 2, v31
    buffer_store_dwordx2 v[28:29], v30, s[8:11], s16 offen sc1
    buffer_store_dword v28, v31, s[8:11], s16 offen offset:512 sc1
    buffer_store_dwordx2 v[28:29], v30, s[8:11], s17 offen sc1
    buffer_store_dword v28, v31, s[8:11], s17 offen offset:512 sc1
    ''')
    A(f'''
    v_bfe_u32 v17, v0, 2, 2
    v_lshl_add_u32 v17, v3, 2, v17
    v_lshlrev_b32 v17, 6, v17
    v_and_b32 v18, 3, v0
    v_lshl_add_u32 v17, v18, 3, v17
    v_add_u32 v17, s56, v17
    v_bfe_u32 v18, v0, 4, 1
    v_lshl_add_u32 v22, v18, 5, v17
    v_lshl_add_u32 v23, v18, 10, v17
    s_mov_b32 s65, 0x3f803f80
    s_mov_b32 s19, 0xffff0000
    ''')
    for f in range(2):
        r = RES + 4 * f
        A(f'v_permlane32_swap_b32 {v(r)}, {v(r + 2)}\nv_permlane32_swap_b32 {v(r + 1)}, {v(r + 3)}')
    stamp(A)
    A(f's_add_u32 s16, {TOFF}, {X[0]}\ns_add_u32 s17, {SOFF}, {ST[0]}')
    A(f'buffer_store_dwordx4 {v(RES, 4)}, v1, s[8:11], s16 offen sc1')
    A(f'buffer_store_dwordx4 {v(RES + 4, 4)}, v1, s[8:11], s16 offen offset:1024 sc1')
    for d in range(8):
        A(f'v_lshlrev_b32 {v(32 + 2 * d)}, 16, {v(RES + d)}\nv_and_b32 {v(33 + 2 * d)}, s19, {v(RES + d)}')
    stats_part(A, 32, 28, 's17', 'sc1')

    def tr(dst, base, o):
        A(f'ds_read_b64_tr_b16 {v(dst, 2)}, {base} offset:{o}\nds_read_b64_tr_b16 {v(dst + 2, 2)}, {base} offset:{o + 512}')

    def csum(acc, regs):
        A(f'v_mov_b32 {v(acc)}, 0\nv_mov_b32 {v(acc + 1)}, 0')
        for i, r in enumerate(regs):
            A(f'v_dot2_f32_bf16 {v(acc + (i & 1))}, {v(r)}, s65, {v(acc + (i & 1))}')
        A(f'v_add_f32 {v(acc)}, {v(acc)}, {v(acc + 1)}')
        swap_add(A, acc, acc + 1)
    A.wait('pa')
    tr(32, 'v22', 0)
    tr(36, 'v22', 1024)
    A(f'''
    s_lshl_b32 s16, {RB}, 2
    s_add_u32 s16, s16, s59
    s_sub_u32 s16, s16, 1
    s_lshl_b32 s17, {RB}, 1
    s_add_u32 s17, s17, 64
    s_cmp_eq_u32 s59, 0
    s_cselect_b32 s16, s17, s16
    s_cselect_b32 s18, 1, 2
    s_lshl_b32 s18, s18, 10
    s_mul_i32 s17, {C}, 96
    s_add_u32 s16, s16, s17
    s_lshl_b32 s16, s16, 10
    s_add_u32 s16, s16, {WQKV}
    s_add_u32 s18, s18, s16
    buffer_store_dwordx4 v[32:35], v1, s[8:11], s16 offen sc1
    buffer_store_dwordx4 v[36:39], v1, s[8:11], s18 offen sc1
    ''')
    csum(40, range(32, 40))
    A(f'''
    s_lshl_b32 s16, {C}, 4
    s_add_u32 s16, s16, {RB}
    s_mul_i32 s17, s16, 384
    s_lshl_b32 s18, s59, 7
    s_add_u32 s17, s17, s18
    s_add_u32 s17, s17, {CSQ}
    v_lshlrev_b32 v24, 2, v2
    ''')
    A('buffer_store_dword v40, v24, s[8:11], s17 offen sc1', tok='pas')
    stamp(A)
    poll(A, 'v25', '0', '1', srd='s[12:15]')
    if CFG['p0b_late']:
        p0b_loads()
    A.wait('pas')
    stamp(A)
    A(f'''
    s_lshl_b32 s16, {C}, 8
    s_add_u32 s33, s16, {CFL}
    s_or_b32 s17, {XCC}, 16
    ''')
    flag(A, XFA, 's17', 'sc1')
    arrive(A, 0)
    A.wait('pb')
    for u in range(2):
        for t in range(2):
            tr(32 + 8 * t + 4 * u, 'v23', (2 + 2 * u) * KB + 32 * t)
    tr(48, 'v22', 6 * KB)
    tr(52, 'v22', 7 * KB)
    tr(56, 'v22', 8 * KB)
    A(f'''
    s_lshl_b32 s16, {C}, 4
    s_add_u32 s16, s16, {RB}
    s_lshl_b32 s16, s16, 10
    s_lshl_b32 s17, {W}, 8
    s_add_u32 s16, s16, s17
    s_add_u32 s34, s16, {CSG}
    ''')
    for t in range(2):
        A(f'''
        s_lshl_b32 s16, {W}, 1
        s_add_u32 s16, s16, {t}
        s_mul_i32 s17, {RB}, 6
        s_add_u32 s17, s17, s16
        s_lshl_b32 s18, s16, 5
        s_lshl_b32 s19, {RB}, 1
        s_add_u32 s18, s18, s19
        s_cmp_lt_u32 s16, 3
        s_cselect_b32 s17, s17, s18
        s_cselect_b32 s18, 3, 1
        s_lshl_b32 s18, s18, 10
        s_mul_i32 s19, {C}, 224
        s_add_u32 s17, s17, s19
        s_lshl_b32 s17, s17, 10
        s_add_u32 s17, s17, {WGU}
        s_add_u32 s18, s18, s17
        ''')
        if t == 1:
            A(f's_cmp_eq_u32 {W}, 3\ns_cbranch_scc1 L_notile')
        A(f'buffer_store_dwordx4 {v(32 + 8 * t, 4)}, v1, s[8:11], s17 offen sc1')
        A(f'buffer_store_dwordx4 {v(36 + 8 * t, 4)}, v1, s[8:11], s18 offen sc1')
        csum(60 + 2 * t, range(32 + 8 * t, 40 + 8 * t))
        A(f'buffer_store_dword {v(60 + 2 * t)}, v24, s[8:11], s34 offen offset:{128 * t} sc1')
    A.label('L_notile')
    A(f'''
    s_lshl_b32 s16, {CB}, 5
    s_add_u32 s16, s16, {RB64}
    s_lshl_b32 s16, s16, 1
    s_and_b32 s17, {W}, 1
    s_add_u32 s16, s16, s17
    s_lshl_b32 s16, s16, 10
    s_add_u32 s16, s16, {WO}
    buffer_store_dwordx4 v[48:51], v1, s[8:11], s16 offen sc1
    s_mul_i32 s16, {CB}, 112
    s_lshr_b32 s17, {RB}, 2
    s_mul_i32 s17, s17, 28
    s_add_u32 s16, s16, s17
    s_lshl_b32 s17, s64, 2
    s_add_u32 s16, s16, s17
    s_and_b32 s17, {RB}, 3
    s_add_u32 s16, s16, s17
    s_lshl_b32 s16, s16, 11
    s_add_u32 s16, s16, {WD}
    buffer_store_dwordx4 v[52:55], v1, s[8:11], s16 offen sc1
    ''')
    A('buffer_store_dwordx4 v[56:59], v1, s[8:11], s16 offen offset:1024 sc1', tok='pbs')
    stamp(A)
    A(f's_lshl_b32 s35, {RB32}, 7\ns_add_u32 s35, s35, {XFL}\nv_and_b32 v25, 15, v0\nv_lshlrev_b32 v25, 2, v25')
    presample(A, 'v26', 'v25', 's35')
    presample(A, 'v27', 'v13', 's33')
    poll(A, 'v25', 's35', '16', pre='v26')
    A.wait('pbs')
    arrive(A, 128)
    if CFG['xpre']:
        k1_xpro(A)
    poll(A, 'v13', 's33', '16', pre='v27')
    stamp(A)
    A(f'''
    s_mul_i32 s16, {C}, {16 * 384}
    s_lshl_b32 s17, s59, 7
    s_add_u32 s16, s16, s17
    s_add_u32 s16, s16, {CSQ}
    v_mul_u32_u24 v7, {8 * 384}, v3
    v_add_u32 v7, v7, v24
    s_add_u32 s17, s59, 2
    s_cmp_ge_u32 s17, 3
    s_cselect_b32 s18, 3, 0
    s_sub_u32 s17, s17, s18
    s_lshl_b32 s17, s17, 10
    s_add_u32 s17, s17, {L_XQ}
    ''')
    ld, fin = colsum_frag(A, 32, 's16', 384, 's17', 40)
    ld()
    wqkv_start(A).upto(2)
    fin()
    A.wait('q0')
    A(f'v_and_b32 v26, 15, v26\nv_cmp_ne_u32 vcc, {XCC}, v26')
    stamp(A)
    if CFG.get('dbgstamp'):
        A(f'''
        s_cmp_lg_u32 s2, {CFG['dbgstamp']}
        s_cbranch_scc1 L_nodbg
        s_cmp_lg_u32 {W}, 0
        s_cbranch_scc1 L_nodbg
        v_readlane_b32 s16, v15, 1
        v_subrev_u32 v16, s16, v15
        v_lshlrev_b32 v7, 2, v0
        s_mov_b64 exec, 0xfff
        buffer_store_dword v16, v7, s[12:15], 0 offen offset:16
        s_mov_b64 exec, -1
        ''')
        A.label('L_nodbg')
    stamp_flush(A, 0)
    if CFG['force_safe'] or CFG['xmap'] != 8:
        A('s_branch L_safe' + '_x' * CFG['xpre'])
    else:
        A('s_cbranch_vccnz L_safe' + '_x' * CFG['xpre'])
        A('s_branch L_fast' + '_x' * CFG['xpre'])


def wqkv_start(A):
    A(f's_mul_i32 s32, {C}, {96 * KB}\ns_add_u32 s32, s32, s31\ns_add_u32 s32, s32, {WQKV}')
    return Dma(A, 'q', 's32')


BC0 = 'op_sel_hi:[1,0]'
BC1 = 'op_sel:[0,1,0] op_sel_hi:[1,1,1]'


def wd_reg(i):
    return a(128 + 4 * i, 4) if i < 32 else v(160 + 4 * (i - 32), 4)


class St:
    pass


def wdload(A, S, n=1):
    for _ in range(n):
        if not S.wdq:
            return
        i = S.wdq.pop(0)
        st, c = i >> 1, i & 1
        base = 4096 * (st >> 1)
        if base != S.wdbase:
            A(f's_add_u32 s36, s36, {base - S.wdbase}' if base > S.wdbase else f's_sub_u32 s36, s36, {S.wdbase - base}')
            S.wdbase = base
        A(f'buffer_load_dwordx4 {wd_reg(i)}, {("v10", "v11")[c]}, s[8:11], s36 offen offset:{(st & 1) * 2048} sc1')


def xload1(A, kg):
    A(f'buffer_load_dwordx4 {a(4 * kg, 4)}, v1, s[8:11], s34 offen offset:{(kg & 3) * 1024} sc1')
    if kg & 3 == 3:
        A('s_add_u32 s34, s34, 4096')


def k1_xpro(A):
    A(f'''
    s_lshl_b32 s34, {LAY}, 22
    s_lshl_b32 s16, {RB32}, 15
    s_add_u32 s34, s34, s16
    s_add_u32 s34, s34, {XB}
    s_lshl_b32 s35, {LAY}, 19
    s_lshl_b32 s16, {RB32}, 12
    s_add_u32 s35, s35, s16
    s_add_u32 s35, s35, {SB}
    ''')
    for kg in range(CFG['xdepth']):
        xload1(A, kg)
        if kg == 3:
            stats_load(A, 112, 's35')


def if_layer(A, lay, fn):
    lab = A.uid('lay')
    A(f's_cmp_lg_u32 {LAY}, {lay}\ns_cbranch_scc1 {lab}')
    fn()
    A.label(lab)


def if_else(A, fn0, fn1):
    lab = A.uid('lay')
    A(f's_cmp_lg_u32 {LAY}, 0\ns_cbranch_scc1 {lab}_1')
    fn0()
    A(f's_branch {lab}_2')
    A.label(lab + '_1')
    fn1()
    A.label(lab + '_2')


def k1(A, m, sc, S):
    KT, VT, QT = 16, 32, 48
    WB, STR, MEAN, RSTD, T, XF, RL = 88, 112, 128, 129, 130, 132, 144
    P = 88
    D = CFG['xdepth']
    xload = lambda kg: xload1(A, kg)

    def woload(i):
        hh, c = i >> 1, i & 1
        A(f'buffer_load_dwordx4 {a(128 + 8 * hh + 4 * c, 4)}, {("v10", "v11")[c]}, s[8:11], s36 offen '
          f'offset:{(hh & 1) * 2048} sc1')
        if i & 3 == 3:
            A('s_add_u32 s36, s36, 4096')
    k1_xpro(A)
    A.label(m + '_x')
    Q = Dma(A, 'q', 's32')
    Q.i = 8

    def l0_chunk(j):
        lab = A.uid('l0')
        A(f's_cmp_lg_u32 {LAY}, 0\ns_cbranch_scc1 {lab}')
        Q.upto(j + 1)
        A.label(lab)
    NB, LAG = 6, 3
    buf = lambda p: v(WB + 4 * (p % NB), 4)
    stat = stats_combine(STR, MEAN, RSTD, T, XF)
    stat += [f's_lshl_b32 s16, {W}, 7', f's_add_u32 s16, s16, {L_RS}', f'v_lshl_add_u32 v7, v2, 2, s16',
             f'ds_write_b32 v7, {v(RSTD)}', f'v_lshl_add_u32 v7, v3, 4, s16']
    stat += [f'ds_read_b128 {v(STR + 4 * j, 4)}, v7 offset:{32 * j}' for j in range(4)]
    stat += [f's_mov_b32 s38, {f2u(LOG2E)}', f'v_mul_f32 {v(MEAN)}, s38, {v(RSTD)}',
             f's_mov_b32 s40, {f2u(1e-6)}', f's_mov_b32 s41, {f2u(1e-6)}']
    addr = f'''
    v_bfe_u32 v7, v0, 4, 1
    v_lshlrev_b32 v136, 8, v7
    v_lshlrev_b32 v137, 4, v7
    v_bfe_u32 v7, v0, 2, 1
    v_lshlrev_b32 v138, 3, v7
    v_bfe_u32 v7, v0, 3, 1
    v_lshl_add_u32 v138, v7, 2, v138
    v_and_b32 v7, 3, v0
    v_add_u32 v138, v138, v7
    s_mul_i32 s16, {W}, 2176
    s_add_u32 s16, s16, {L_RED}
    v_add_u32 v136, v136, v138
    v_lshl_add_u32 v136, v3, 6, v136
    v_lshl_add_u32 v136, v136, 2, s16
    v_add_u32 v137, v137, v138
    v_lshl_add_u32 v137, v137, 2, s16
    s_lshl_b32 s16, {W}, 9
    v_lshl_add_u32 v138, v0, 3, s16
    v_add_u32 v139, {L_RED}, v138
    s_lshl_b32 s16, {W}, 5
    s_add_u32 s16, s16, 2048
    v_and_b32 v7, 7, v0
    v_lshl_add_u32 v142, v7, 2, s16
    v_add_u32 v143, {L_RED}, v142
    s_mul_i32 s39, {LAY}, {KVS}
    s_mul_i32 s16, {C}, {16 * 2176}
    s_add_u32 s39, s39, s16
    s_add_u32 s39, s39, {KVP}
    s_mul_i32 s16, {RB}, 2176
    s_add_u32 s37, s39, s16
    s_lshl_b32 s36, {CB}, 16
    s_lshl_b32 s16, {W}, 14
    s_add_u32 s36, s36, s16
    s_add_u32 s36, s36, {WO}
    v_and_b32 v7, 16, v0
    v_cmp_eq_u32 s[64:65], 0, v7
    '''.strip().split('\n')
    stat += [f'v_mul_f32 {v(RL + i)}, s38, {v(STR + i)}' for i in range(16)]
    groups = []
    for p in range(66 + LAG):
        g = []
        if p % 16 == 0 and p < 64:
            j = p // 16
            g.append(lambda j=j: (A.wait(f'q{j}', 'xfw'), A('s_barrier')))
        if p < 66:
            g.append(lds_rd(buf(p), p * KB if p < 64 else L_XQ + (p - 64) * KB))
        pre, g = (g, []) if p >= LAG else ([], g)
        if p >= LAG:
            q = p - LAG
            kg, t = q >> 1, q & 1
            xf = a(4 * kg, 4) if kg < 32 else v(XF, 4)
            acc = v((KT, VT)[t], 16)
            g.append(f'{MF} {acc}, {xf}, {buf(q)}, {"0" if kg == 0 else acc}')
            g += pre
            if t == 1 and kg + D < 32:
                g.append(lambda kg=kg: xload(kg + D))
            if t == 1 and kg in (1, 7):
                g.append(lambda j=2 + kg // 7: l0_chunk(j))
            if t == 1 and 32 <= kg + D < 40 and (kg + D) % 2 == 0:
                n = (kg + D - 32) // 2
                g.append(lambda n=n: if_else(A, lambda: Q.emit(2), lambda: [woload(i) for i in (2 * n, 2 * n + 1)]))
        groups.append(g)
    emit_with_fill(A, groups[:2 + LAG], [], 0)
    stamp(A)
    even_fill(A, groups[2 + LAG:20], addr)
    even_fill(A, groups[20:64], stat)
    emit_with_fill(A, groups[64:], [], 0)
    Q.upto(6)
    stamp(A)
    for i in range(0, 16, 2):
        t = T if i & 2 else XF + 8
        A(f'''
        v_pk_mul_f32 {v(t, 2)}, {v(KT + i, 2)}, {v(RL + i, 2)}
        v_pk_fma_f32 {v(KT + i, 2)}, {v(KT + i, 2)}, {v(STR + i, 2)}, s[40:41]
        v_exp_f32_e64 {v(t)}, {v(t)} clamp
        v_exp_f32_e64 {v(t + 1)}, {v(t + 1)} clamp
        v_pk_mul_f32 {v(VT + i, 2)}, {v(VT + i, 2)}, {v(STR + i, 2)}
        v_max_f32 {v(KT + i)}, s40, {v(KT + i)}
        v_max_f32 {v(KT + i + 1)}, s40, {v(KT + i + 1)}
        v_cvt_pk_bf16_f32 {v(P + 16 + i // 2)}, {v(VT + i)}, {v(VT + i + 1)}
        v_pk_add_f32 {v(KT + i, 2)}, {v(KT + i, 2)}, {v(t, 2)}
        v_cvt_pk_bf16_f32 {v(P + 8 + i // 2)}, {v(KT + i)}, {v(KT + i + 1)}
        ''')
        if i == 6:
            A(f'{MF} {v(64, 16)}, {v(P + 16, 4)}, {v(P + 8, 4)}, 0')
    D2 = 64
    A(f'{MF} {v(D2, 16)}, {v(P + 20, 4)}, {v(P + 12, 4)}, {v(D2, 16)}')
    for i in range(4, 16, 4):
        A(f'v_pk_add_f32 {v(KT, 2)}, {v(KT, 2)}, {v(KT + i, 2)}\n'
          f'v_pk_add_f32 {v(KT + 2, 2)}, {v(KT + 2, 2)}, {v(KT + i + 2, 2)}')
    A(f'v_pk_add_f32 {v(KT, 2)}, {v(KT, 2)}, {v(KT + 2, 2)}\nv_add_f32 {v(KT)}, {v(KT)}, {v(KT + 1)}')
    swap_add(A, KT, T)
    A(f'ds_write_b32 v137, {v(KT)} offset:2048')
    for i in range(8):
        A(f'v_cndmask_b32 {v(KT + 1 + i)}, {v(D2 + 8 + i)}, {v(D2 + i)}, s[64:65]')
        A(f'ds_write_b32 v136, {v(KT + 1 + i)} offset:{(8 * (i >> 2) + (i & 3)) * 64}', tok='kvw')
    A.wait('kvw', 'q4', 'q5')
    A('s_barrier')
    for w in range(4):
        A(f'ds_read_b64 {v(KT + 2 * w, 2)}, v139 offset:{w * 2176}')
        A(f'ds_read_b32 {v(KT + 8 + w)}, v143 offset:{w * 2176}')
    rq = lambda p: lds_rd(buf(p), (64 + p) * KB if p < 32 else L_XQ + 2 * KB)
    A(rq(0))
    A(rq(1))
    A(rq(2))
    A(f'''
    v_pk_add_f32 {v(KT, 2)}, {v(KT, 2)}, {v(KT + 2, 2)}
    v_add_f32 {v(KT + 8)}, {v(KT + 8)}, {v(KT + 9)}
    v_pk_add_f32 {v(KT + 4, 2)}, {v(KT + 4, 2)}, {v(KT + 6, 2)}
    v_add_f32 {v(KT + 10)}, {v(KT + 10)}, {v(KT + 11)}
    v_pk_add_f32 {v(KT, 2)}, {v(KT, 2)}, {v(KT + 4, 2)}
    v_add_f32 {v(KT + 8)}, {v(KT + 8)}, {v(KT + 10)}
    v_min_u32 {v(KT)}, -2, {v(KT)}
    v_min_u32 {v(KT + 1)}, -2, {v(KT + 1)}
    v_min_u32 {v(KT + 8)}, -2, {v(KT + 8)}
    buffer_store_dwordx2 {v(KT, 2)}, v138, s[8:11], s37 offen sc1
    buffer_store_dword {v(KT + 8)}, v142, s[8:11], s37 offen sc1
    ''')
    stamp(A)
    def l0_wo():
        A(f's_and_b32 s42, s33, {0xffffffff ^ 256}\nv_and_b32 v7, 1, v0\nv_lshlrev_b32 v7, 8, v7\nv_add_u32 v7, 128, v7')
        poll(A, 'v7', 's42', '16')
        for i in range(16):
            woload(i)
    assert CFL % 512 == 0
    if_else(A, l0_wo, lambda: [woload(i) for i in range(8, 16)])
    A(f's_mul_i32 s32, {C}, {224 * KB}\ns_add_u32 s32, s32, s31\ns_add_u32 s32, s32, {WGU}')
    G = S.G = Dma(A, 'g', 's32')
    fill = [lambda: G.emit(1)] * CFG['w1_g']
    addr2 = f'''
    v_mul_u32_u24 v136, 2176, v3
    v_lshl_add_u32 v136, v2, 4, v136
    v_lshrrev_b32 v137, 2, v0
    v_mul_u32_u24 v137, 2176, v137
    v_and_b32 v138, 3, v0
    v_lshl_add_u32 v137, v138, 3, v137
    s_lshl_b32 s17, {W}, 9
    s_add_u32 s37, s39, s17
    s_lshl_b32 s17, {W}, 5
    s_add_u32 s44, s39, s17
    s_lshr_b32 s16, {W}, 1
    s_lshl_b32 s17, s16, 6
    s_lshl_b32 s18, {W}, 9
    s_add_u32 s17, s17, s18
    s_add_u32 s17, s17, {L_KV}
    v_lshl_add_u32 v142, v2, 4, s17
    s_mul_i32 s16, s16, 1088
    s_and_b32 s17, {W}, 1
    s_lshl_b32 s17, s17, 5
    s_add_u32 s16, s16, s17
    s_add_u32 s16, s16, {L_KV + 1024}
    v_lshl_add_u32 v143, v138, 3, s16
    v_min_u32 v138, 16, v2
    v_lshlrev_b32 v138, 6, v138
    v_lshl_add_u32 v138, v3, 5, v138
    v_add_u32 v138, {L_KV}, v138
    s_lshr_b32 s16, {RB32}, 1
    s_lshl_b32 s17, s16, 7
    s_lshl_b32 s16, s16, 4
    s_add_u32 s16, s16, {C}
    s_lshl_b32 s16, s16, 12
    s_and_b32 s18, {W}, 1
    s_lshl_b32 s19, s18, 10
    s_add_u32 s16, s16, s19
    s_lshl_b32 s19, {LAY}, 21
    s_add_u32 s16, s16, s19
    s_add_u32 s45, s16, {OB}
    s_lshl_b32 s19, {C}, 1
    s_add_u32 s18, s18, s19
    s_lshl_b32 s18, s18, 2
    s_add_u32 s47, s17, s18
    s_add_u32 s46, s47, {OFL}
    s_add_u32 s47, s47, {HFL}
    '''.strip().split('\n')
    qg = []
    for p in range(33):
        g = []
        xf = a(4 * p, 4) if p < 32 else v(XF, 4)
        g.append(f'{MF} {v(QT, 16)}, {buf(p)}, {xf}, {"0" if p == 0 else v(QT, 16)}')
        if p + 3 < 33:
            g.append(rq(p + 3))
        if p < len(fill):
            g.append(fill[p])
        qg.append(g)
    even_fill(A, qg, addr2)
    for x in fill[33:]:
        run(A, x)
    stamp(A)
    for i in range(0, 16, 2):
        t = T if i & 2 else XF + 8
        A(f'''
        v_pk_mul_f32 {v(t, 2)}, {v(QT + i, 2)}, {v(MEAN, 2)} {BC0}
        v_pk_fma_f32 {v(QT + i, 2)}, {v(QT + i, 2)}, {v(MEAN, 2)}, s[40:41] {BC1}
        v_exp_f32_e64 {v(t)}, {v(t)} clamp
        v_exp_f32_e64 {v(t + 1)}, {v(t + 1)} clamp
        v_max_f32 {v(QT + i)}, s40, {v(QT + i)}
        v_max_f32 {v(QT + i + 1)}, s40, {v(QT + i + 1)}
        v_pk_add_f32 {v(QT + i, 2)}, {v(QT + i, 2)}, {v(t, 2)}
        v_cvt_pk_bf16_f32 {v(P + i // 2)}, {v(QT + i)}, {v(QT + i + 1)}
        ''')
    stamp(A)
    A('s_mov_b32 s58, 0')
    A.label(m + '_kvr')
    A('s_mov_b32 s43, s37')
    A('buffer_load_dwordx2 v[48:49], v137, s[8:11], s44 offen offset:2048 sc1')
    for i in range(8):
        A(f'buffer_load_dwordx4 {v(16 + 4 * i, 4)}, v136, s[8:11], s43 offen sc1')
        if i < 7:
            A(f's_add_u32 s43, s43, {2 * 2176}')
    A('s_add_u32 s58, s58, 1')
    A('v_max_u32 v50, v48, v49')
    for i in range(16):
        A(f'v_max3_u32 v50, v50, {v(16 + 2 * i)}, {v(17 + 2 * i)}')
    A(f'''
    v_cmp_eq_u32 vcc, -1, v50
    s_cmp_gt_u32 s58, 0x100000
    s_cbranch_scc1 {m}_kvx
    s_cbranch_vccnz {m}_kvr
    ''')
    A.label(m + '_kvx')
    stamp(A)
    G.emit(CFG['w2_g'])
    assert G.i <= 16
    for ror in (4, 8):
        for j in range(2):
            A(f'v_add_f32_dpp {v(50 + j)}, {v(48 + j)}, {v(48 + j)} row_ror:{ror} row_mask:0xf bank_mask:0xf')
        A('v_mov_b32 v48, v50\nv_mov_b32 v49, v51')
    for sw in ('16', '32'):
        A(f'v_permlane{sw}_swap_b32 v50, v48\nv_permlane{sw}_swap_b32 v51, v49\nv_pk_add_f32 v[48:49], v[50:51], v[48:49]')
        if sw == '16':
            A('v_mov_b32 v50, v48\nv_mov_b32 v51, v49')
    A('ds_write_b64 v143, v[48:49]')
    for i in range(1, 8):
        for j in (0, 2):
            A(f'v_pk_add_f32 {v(16 + j, 2)}, {v(16 + j, 2)}, {v(16 + 4 * i + j, 2)}')
    for j in range(4):
        A(f'v_mov_b32 {v(20 + j)}, {v(16 + j)}')
    for j in range(4):
        A(f'v_permlane32_swap_b32 {v(20 + j)}, {v(16 + j)}')
    for j in (0, 2):
        A(f'v_pk_add_f32 {v(16 + j, 2)}, {v(20 + j, 2)}, {v(16 + j, 2)}')
    A('ds_write_b128 v142, v[16:19]', tok='kvt')
    A.wait('kvt')
    A('s_barrier')
    for f in range(2):
        A(f'ds_read_b128 {v(16 + 8 * f, 4)}, v138 offset:{f * 1088}\n'
          f'ds_read_b128 {v(20 + 8 * f, 4)}, v138 offset:{f * 1088 + 16}')
    for f in range(2):
        k = 16 + 8 * f
        for d in range(4):
            A(f'v_cvt_pk_bf16_f32 {v(k + d)}, {v(k + 2 * d)}, {v(k + 2 * d + 1)}')
        A(f'{MF} {v(32 + 16 * f, 16)}, {v(k, 4)}, {v(P + 4 * f, 4)}, 0')
    A(f'''
    s_lshl_b32 s16, {RB64}, 7
    s_lshl_b32 s17, {W}, 5
    s_add_u32 s51, s16, s17
    s_add_u32 s55, s51, {OFL}
    s_add_u32 s51, s51, {HFL}
    v_and_b32 v7, 7, v0
    v_lshlrev_b32 v139, 2, v7
    s_add_u32 s56, {LAY}, 1
    ''')
    for f in range(2):
        d = 32 + 16 * f
        A(f'v_add_f32 {v(T)}, s40, {v(d + 8)}\nv_rcp_f32 {v(T)}, {v(T)}')
        for i in range(0, 8, 2):
            A(f'v_pk_mul_f32 {v(d + i, 2)}, {v(d + i, 2)}, {v(T, 2)} {BC0}')
        for i in range(4):
            A(f'v_cvt_pk_bf16_f32 {v(P + 8 + 4 * f + i)}, {v(d + 2 * i)}, {v(d + 2 * i + 1)}')
        A(f'buffer_store_dwordx4 {v(P + 8 + 4 * f, 4)}, v1, s[8:11], s45 offen offset:{f * 2048} {sc.o}', tok='os')
    stamp(A)
    A(f's_cmp_lg_u32 {LAY}, 0\ns_cbranch_scc1 {m}_nocs0')
    A(f'''
    s_lshl_b32 s16, {C}, 14
    s_lshl_b32 s17, {W}, 8
    s_add_u32 s16, s16, s17
    s_add_u32 s16, s16, {CSG}
    s_add_u32 s17, s16, 128
    v_lshlrev_b32 v7, 2, v2
    v_lshl_add_u32 v7, v3, 13, v7
    s_lshl_b32 s48, {W}, 11
    s_add_u32 s48, s48, {L_XG}
    s_add_u32 s49, s48, 1024
    ''')
    l0, f0 = colsum_frag(A, 16, 's16', 1024, 's48', 32)
    l1, f1 = colsum_frag(A, 24, 's17', 1024, 's49', 36)
    l0()
    l1()
    A.label(m + '_nocs0')
    G.emit(CFG['w3_g'])
    A(f'''
    s_lshl_b32 s34, {RB64}, 16
    s_lshl_b32 s17, {W}, 14
    s_add_u32 s34, s34, s17
    s_lshl_b32 s17, {LAY}, 21
    s_add_u32 s34, s34, s17
    s_add_u32 s34, s34, {OB}
    s_mul_i32 s36, {CB}, {224 * KB}
    s_mul_i32 s16, {W}, {56 * KB}
    s_add_u32 s36, s36, s16
    s_add_u32 s36, s36, {WD}
    ''')
    A.wait('os')
    flag(A, 's46', 's56', sc.f)
    stamp(A)
    A(f's_cmp_lg_u32 {LAY}, 0\ns_cbranch_scc1 {m}_nocs')
    f0()
    A(f's_cmp_eq_u32 {W}, 3\ns_cbranch_scc1 {m}_nocs')
    f1()
    A.label(m + '_nocs')


def reduce_epilogue(A, m):
    T = 88
    for sg in (3, 2, 1):
        A(f'''
        s_xor_b32 s16, {W}, {sg}
        s_mul_i32 s16, s16, {3 * 4096}
        s_add_u32 s16, s16, {L_RED + (sg - 1) * 4096}
        v_add_u32 {v(T + 4 + sg)}, s16, v1
        ''')
    A(f's_mul_i32 s16, {W}, {3 * 4096}\ns_add_u32 s16, s16, {L_RED}\nv_add_u32 v7, s16, v1\ns_mov_b32 s17, 0xffff0000')
    for d in range(8):
        A(f'v_lshlrev_b32 {v(96 + 2 * d)}, 16, {v(RES + d)}\nv_and_b32 {v(97 + 2 * d)}, s17, {v(RES + d)}')


def reduce_finish(A, m):
    T = 88
    for sg in (3, 2, 1):
        for jj in range(4):
            A(f'ds_write_b128 {v(T + 4 + sg)}, {v(ACC + 16 * sg + 4 * jj, 4)} offset:{jj * 1024}', tok='red')
    for d in range(8):
        A(f'v_pk_add_f32 {v(ACC + 2 * d, 2)}, {v(ACC + 2 * d, 2)}, {v(96 + 2 * d, 2)}')
    A.wait('red')
    A('s_barrier')
    for jj in range(4):
        for sg in range(1, 4):
            A(f'ds_read_b128 {v(ACC + 16 * sg + 4 * jj, 4)}, v7 offset:{(sg - 1) * 4096 + jj * 1024}')
    for jj in range(4):
        for sg in range(1, 4):
            for i in range(4 * jj, 4 * jj + 4, 2):
                A(f'v_pk_add_f32 {v(ACC + i, 2)}, {v(ACC + i, 2)}, {v(ACC + 16 * sg + i, 2)}')
        for d in range(2 * jj, 2 * jj + 2):
            A(f'v_cvt_pk_bf16_f32 {v(RES + d)}, {v(ACC + 2 * d)}, {v(ACC + 2 * d + 1)}')


def publish_addr(j_off):
    return f'''
    s_lshl_b32 s48, {LAY}, 22
    s_add_u32 s48, s48, {TOFF}
    s_add_u32 s48, s48, {XB + j_off * 2048 * KB}
    s_lshl_b32 s49, {LAY}, 19
    s_add_u32 s49, s49, {SOFF}
    s_add_u32 s49, s49, {SB + j_off * 256 * KB}
    s_lshl_b32 s50, {LAY}, 5
    s_add_u32 s50, s50, {16 * (j_off + 1)}
    s_lshl_b32 s42, {RB32}, 7
    s_add_u32 s42, s42, {XFL}
    v_and_b32 v138, 15, v0
    v_lshlrev_b32 v138, 2, v138
    '''


def publish_x(A, sc, window):
    A(f'''
    buffer_store_dwordx4 {v(RES, 4)}, v1, s[8:11], s48 offen {sc.x}
    buffer_store_dwordx4 {v(RES + 4, 4)}, v1, s[8:11], s48 offen offset:1024 {sc.x}
    ''')
    stats_part(A, ACC, 88, 's49', sc.x, tok='xs')
    stamp(A)
    window()
    A.wait('xs')
    flag(A, XFA, 's50', sc.f)
    stamp(A)
    poll(A, 'v138', 's42', 's50')
    stamp(A)


def k2(A, m, sc, S):
    G = S.G
    poll(A, 'v139', 's55', 's56')
    stamp(A)
    for hh in range(8):
        for r in range(2):
            A(f'buffer_load_dwordx4 {a(8 * hh + 4 * r, 4)}, {("v8", "v9")[r]}, s[8:11], s34 offen '
              f'offset:{(hh & 1) * 2048} sc1')
        if hh & 1:
            A('s_add_u32 s34, s34, 4096')
    S.wdq = list(range(32, 32 + CFG['w4_wd'])) + list(range(32)) + list(range(32 + CFG['w4_wd'], 56))
    S.wdbase = 0
    w4 = [lambda: G.emit(1)] * (24 - G.i) + [lambda: wdload(A, S)] * CFG['w4_wd']
    if not CFG['w4_g_in']:
        for x in w4:
            x()
        w4 = []
    A(publish_addr(1))
    reduce_epilogue(A, m)
    for hh in range(8):
        for r, c in ((1, 1), (1, 0), (0, 1), (0, 0)):
            t = v(ACC + 16 * (2 * r + c), 16)
            A(f'{MF} {t}, {a(128 + 8 * hh + 4 * c, 4)}, {a(8 * hh + 4 * r, 4)}, {"0" if hh == 0 else t}')
            if w4 and (len(w4) > 16 or c == 0):
                w4.pop(0)()
        if hh == 0:
            stamp(A)
    for x in w4:
        x()
    stamp(A)
    reduce_finish(A, m)

    def w5():
        A('s_barrier')
        G.emit(CFG['w5_g'])
        wdload(A, S, CFG['w5_wd'])
        A(f'''
        s_lshl_b32 s34, {LAY}, 22
        s_lshl_b32 s16, {RB32}, 15
        s_add_u32 s34, s34, s16
        s_add_u32 s34, s34, {X[1]}
        s_lshl_b32 s35, {LAY}, 19
        s_lshl_b32 s16, {RB32}, 12
        s_add_u32 s35, s35, s16
        s_add_u32 s35, s35, {ST[1]}
        s_lshr_b32 s16, {RB32}, 1
        s_mul_i32 s16, s16, 112
        s_lshr_b32 s17, {C}, 2
        s_mul_i32 s17, s17, 28
        s_add_u32 s16, s16, s17
        s_and_b32 s17, {C}, 3
        s_add_u32 s16, s16, s17
        s_lshl_b32 s16, s16, 1
        s_and_b32 s17, {W}, 1
        s_add_u32 s16, s16, s17
        s_lshl_b32 s16, s16, 10
        s_mul_i32 s17, {LAY}, {7168 * KB}
        s_add_u32 s16, s16, s17
        s_add_u32 s52, s16, {HB}
        s_lshl_b32 s53, {LAY}, 1
        s_add_u32 s53, s53, 1
        s_add_u32 s54, s53, 1
        s_mul_i32 s37, {RB64}, {224 * KB}
        s_mul_i32 s16, {W}, {56 * KB}
        s_add_u32 s37, s37, s16
        s_add_u32 s37, s37, s17
        s_add_u32 s37, s37, {HB}
        ''')
    publish_x(A, sc, w5)


def hload(A, S, st):
    while S.wdq and min(S.wdq) < 2 * st + 2:
        S.wdq.sort()
        wdload(A, S)
    for r in range(2):
        A(f'buffer_load_dwordx4 {a(8 * (st % 16) + 4 * r, 4)}, {("v8", "v9")[r]}, s[8:11], s37 offen '
          f'offset:{(st & 1) * 2048} sc1')
    if st & 1:
        A('s_add_u32 s37, s37, 4096')


def k3(A, m, sc, S):
    WB, STR, MEAN, RSTD, T, XF, E = 88, 120, 136, 137, 156, 140, 144
    G = S.G
    D = CFG['xdepth']

    def xload(kg):
        A(f'buffer_load_dwordx4 {a(4 * kg, 4)}, v1, s[8:11], s34 offen offset:{(kg & 3) * 1024} sc1')
        if kg & 3 == 3:
            A('s_add_u32 s34, s34, 4096')
    for kg in range(D):
        xload(kg)
        if kg == 3:
            stats_load(A, STR, 's35')
    items = []
    for kg in range(32):
        for t in range(3):
            items.append((t, kg, (3 * kg + t) * KB, 3 * kg + t))
    for t in range(3):
        items.append((t, 32, L_XG + t * KB, None))
    for t in range(3, 7):
        for kg in range(32):
            p = 32 * t + kg
            items.append((t, kg, (p * KB) % RING, p))
        items.append((t, 32, L_XG + t * KB, None))
    N = len(items)
    accreg = lambda t: ACC + 16 * (t if t < 4 else t - 4)
    NB, LAG = 8, 4
    buf = lambda i: v(WB + 4 * (i % NB), 4)

    def epi(t):
        g = accreg(t)
        pk = 120 + 4 * (t & 1)
        mul = lambda i: f'v_mul_f32 {v(E + i)}, {v(MEAN)}, {v(g + i)}'
        ex = lambda i: f'v_exp_f32 {v(E + i)}, {v(E + i)}'
        fm = lambda i: f'v_fma_f32 {v(E + i)}, {v(E + i)}, {v(RSTD)}, {v(RSTD)}'
        rc = lambda i: f'v_rcp_f32 {v(E + i)}, {v(E + i)}'
        mu = lambda i: f'v_mul_f32 {v(E + i)}, {v(E + i)}, {v(g + 8 + i)}'
        cv = lambda i: f'v_cvt_pk_bf16_f32 {v(pk + i // 2)}, {v(E + i)}, {v(E + i + 1)}'
        L = []
        for s_ in range(8 + 4):
            for fn, d in ((mul, 0), (ex, 1), (fm, 2), (rc, 3), (mu, 4)):
                if 0 <= s_ - d < 8:
                    L.append(fn(s_ - d))
            if s_ - 4 >= 1 and (s_ - 4) % 2 == 1:
                L.append(cv(s_ - 5))
        L.append(lambda: (A(f'buffer_store_dwordx4 {v(pk, 4)}, v1, s[8:11], s52 offen {sc.h}', tok=f'h{t}'),
                          A(f's_add_u32 s52, s52, {8 * KB}')))
        return L
    stat = stats_combine(STR, MEAN, RSTD, T, XF)
    stat += [f'v_mul_f32 {v(MEAN)}, {f2u(-LOG2E)}, {v(RSTD)}', f'v_rcp_f32 {v(RSTD)}, {v(RSTD)}']
    mem = {}

    def spread(lo, hi, fns):
        for k, fn in enumerate(fns):
            mem.setdefault(lo + (hi - lo) * k // max(len(fns), 1), []).append(fn)
    dma1 = lambda: G.emit(1, fresh=False)
    wd1 = lambda: wdload(A, S)
    have = G.i
    kw = CFG['k3_wd']
    spread(4, 24, [dma1] * (36 - have))
    spread(36, 90, [dma1] * 4 + [wd1] * kw[0])
    spread(100, 130, [dma1] * 8 + [wd1] * kw[1])
    spread(133, 163, [dma1] * 8 + [wd1] * kw[2])
    spread(166, 196, [wd1] * kw[3])
    he = CFG['hearly']
    spread(199, 215, [wd1] * kw[4])
    mem.setdefault(205, []).append(lambda: (A.wait('h3'), flag(A, 's47', 's53', sc.f)))
    if he:
        mem.setdefault(216, []).append(lambda: presample(A, 'v158', 'v139', 's51'))
    groups = []
    for i in range(N + LAG):
        g = []
        pre = []
        if i < N:
            t, kg, ad, p = items[i]
            if p == 0:
                pre.append(lambda: (A.wait(*[f'g{q}' for q in range(6)], 'xfw'), A('s_barrier')))
            elif p == 30:
                pre.append('s_barrier')
            elif p is not None and p >= 96 and p % 32 == 0:
                if CFG['k3stamps']:
                    pre.append(lambda: stamp(A))
                pre.append(lambda j=p // 16: (A.wait(f'g{j}', f'g{j + 1}'), A('s_barrier')))
                if CFG['k3stamps']:
                    pre.append(lambda: stamp(A))
            pre.append(lds_rd(buf(i), ad))
        if i >= LAG:
            q = i - LAG
            t, kg, ad, p = items[q]
            if q % 2 == 0 and i + 1 < N and q > 0:
                g.append(f's_waitcnt lgkmcnt({LAG - 2})')
            xf = a(4 * kg, 4) if kg < 32 else v(XF, 4)
            acc = v(accreg(t), 16)
            g.append(f'{MF} {acc}, {buf(q)}, {xf}, {"0" if kg == 0 else acc}')
            g += pre
            if q < 96 and t == 2 and kg + D < 32:
                g.append(lambda kg=kg: xload(kg + D))
            g += mem.get(q, [])
        else:
            g = pre
        groups.append(g)
    b = lambda t: 99 + 33 * t + LAG + 1
    emit_with_fill(A, groups[:3 + LAG], [], 0)
    stamp(A)
    emit_with_fill(A, groups[3 + LAG:30], [], 0)
    even_fill(A, groups[30:92], stat)
    emit_with_fill(A, groups[92:b(0)], [], 0)
    stamp(A)
    e = [epi(t) for t in range(7)]
    hf = len(e[0]) // 2
    even_fill(A, groups[b(0):b(1) - 2], e[0] + e[1][:hf])
    emit_with_fill(A, groups[b(1) - 2:b(1)], [], 0)
    even_fill(A, groups[b(1):b(2) - 2], e[1][hf:] + e[2])
    emit_with_fill(A, groups[b(2) - 2:b(2)], [], 0)
    even_fill(A, groups[b(2):b(3)], e[3] + e[4][:hf])
    even_fill(A, groups[b(3):], e[4][hf:] + e[5])
    assert G.i == 56, G.i
    stamp(A)
    if he:
        poll(A, 'v139', 's51', 's53', pre='v158')
        for st in range(he):
            hload(A, S, st)
    for x in e[6]:
        run(A, x)
    stamp(A)


def k4(A, m, sc, S):
    D = CFG['hdepth']
    he = CFG['hearly']
    if not he:
        poll(A, 'v139', 's51', 's53')
    for st in range(he, D):
        hload(A, S, st)
    A('s_barrier')
    A.wait('h6')
    flag(A, 's47', 's54', sc.f)
    stamp(A)
    Q = wqkv_start(A)
    nq = CFG['k4_q']

    def l0_q(n):
        lab = A.uid('l0')
        A(f's_cmp_lg_u32 {LAY}, 0\ns_cbranch_scc1 {lab}')
        Q.emit(n)
        A.label(lab)
    for st in range(28):
        if st == 26:
            A(publish_addr(2))
            reduce_epilogue(A, m)
        for r, c in ((1, 1), (1, 0), (0, 1), (0, 0)):
            t = v(ACC + 16 * (2 * r + c), 16)
            A(f'{MF} {t}, {wd_reg(2 * st + c)}, {a(8 * (st % 16) + 4 * r, 4)}, {"0" if st == 0 else t}')
        if st == 0:
            stamp(A)
        if st + D == 13:
            presample(A, 'v158', 'v139', 's51')
        if st + D == 16:
            stamp(A)
            poll(A, 'v139', 's51', 's54', pre='v158')
            stamp(A)
        if st + D < 28:
            hload(A, S, st + D)
            if nq and st % 3 == 2 and Q.i < nq:
                l0_q(min(2, nq - Q.i))
        if st + D == 28:
            l0_q(CFG['w7_q'] + nq - Q.i)
    stamp(A)
    reduce_finish(A, m)
    A(f's_cmp_lg_u32 {LAY}, 0\ns_cbranch_scc1 {m}_final')
    publish_x(A, sc, lambda: Q.upto(6))
    stamp(A, True)
    n = NST[0]
    stamp_flush(A, 1)
    A(f's_mov_b32 {LAY}, 1\ns_branch {m}')
    A.label(m + '_final')
    for f in range(2):
        r = RES + 4 * f
        A(f'v_permlane32_swap_b32 {v(r)}, {v(r + 2)}\nv_permlane32_swap_b32 {v(r + 1)}, {v(r + 3)}')
    A(f'''
    s_mov_b64 s[12:13], s[60:61]
    s_mov_b32 s14, {2048 * KB}
    s_mov_b32 s15, 0x20000
    v_lshlrev_b32 v7, 10, v2
    v_lshl_add_u32 v7, v3, 4, v7
    buffer_store_dwordx4 {v(RES, 4)}, v7, s[12:15], s57 offen {CFG['fin_sc']}
    buffer_store_dwordx4 {v(RES + 4, 4)}, v7, s[12:15], s57 offen offset:32 {CFG['fin_sc']}
    ''')
    if CFG['diag']:
        NST[0] = n - 2
        A('s_waitcnt vmcnt(0)')
        stamp(A)
        stamp(A, True)
        stamp_flush(A, 2)
    A('s_endpgm')


def body(A, m, sc):
    S = St()
    A.label(m)
    stamp(A)
    k1(A, m, sc, S)
    k2(A, m, sc, S)
    k3(A, m, sc, S)
    k4(A, m, sc, S)


def build(cfg=None):
    if cfg:
        CFG.update(cfg)
    A = Asm()
    A('.p2align 8')
    A.label(KN)
    p0(A)
    from types import SimpleNamespace as NS
    body(A, 'L_fast', NS(**CFG.get('sc', dict(o='sc1', x='sc1', h='sc1', f=''))))
    body(A, 'L_safe', NS(o='sc1', x='sc1', h='sc1', f='sc1'))
    A.label('L_end')
    A('s_endpgm')
    mx = A.maxreg()
    assert mx['v'] < 256 and mx['a'] < 256 and mx['s'] < 100, mx
    txt = A.finalize([KN])
    head = f'; @launch grid=(256,1,1) block=(256,1,1) lds={LDS}\n'
    head += f'.amdgcn_target "amdgcn-amd-amdhsa--gfx950"\n.text\n.globl {KN}\n.type {KN},@function\n'
    tail = f'''
.section .rodata,"a"
.p2align 6
.amdhsa_kernel {KN}
  .amdhsa_next_free_vgpr 512
  .amdhsa_next_free_sgpr 100
  .amdhsa_accum_offset 256
  .amdhsa_group_segment_fixed_size 0
  .amdhsa_kernarg_size 80
  .amdhsa_user_sgpr_count 2
  .amdhsa_user_sgpr_kernarg_segment_ptr 1
  .amdhsa_system_sgpr_workgroup_id_x 1
  .amdhsa_float_denorm_mode_32 3
.end_amdhsa_kernel
'''
    return head + txt + tail


if __name__ == '__main__':
    import json
    out = sys.argv[1] if len(sys.argv) > 1 else f'cdna_kernels/{NAME}.s'
    cfg = json.loads(sys.argv[2]) if len(sys.argv) > 2 else None
    open(out, 'w').write(build(cfg))
    print('wrote', out)
```

```python
import sys, math
from asmlib import Asm, v, a, s, f2u

KB = 1024
NAME = 'interleave_layers__linear_attn_block__glu_gated_glu__prompt'
KN = NAME + '_kernel'
off = 0


def alloc(n):
    global off
    o = off
    off += (n + 4095) // 4096 * 4096
    return o


WQKV = alloc(16 * 96 * KB)
WO = alloc(512 * KB)
WGU = alloc(16 * 224 * KB)
WD = alloc(1792 * KB)
XB = alloc(4 * 2048 * KB)
X = [XB + j * 2048 * KB for j in range(4)]
SB = alloc(4 * 256 * KB)
ST = [SB + j * 256 * KB for j in range(4)]
OB = alloc(2 * 2048 * KB)
HB = alloc(2 * 7168 * KB)
KVS = 256 * 2176
KVP = alloc(2 * KVS)
CSQ = alloc(256 * 384)
CSG = alloc(256 * 1024)
FL = alloc(20 * KB)
XFL, OFL, HFL, CFL = FL, FL + 8 * KB, FL + 12 * KB, FL + 16 * KB
DIAG = 128 << 20
WS_BYTES = 268435456
LOG2E = math.log2(math.e)
MF = 'v_mfma_f32_32x32x16_bf16'

RING = 144 * KB
L_RED = 96 * KB
L_XQ = 144 * KB
L_XG = 147 * KB
L_RS = 154 * KB
L_KV = 155 * KB
LDS = 160 * KB

W, RB, C, RB32, RB64, CB, LAY, XCC = 's20', 's21', 's22', 's23', 's24', 's25', 's26', 's27'
TOFF, SOFF, XFA = 's28', 's29', 's30'
ACC, RES = 16, 80
CFG = dict(diag=0, force_safe=0, xdepth=8, hdepth=10, xmap=8,
           w1_g=8, w2_g=4, w3_g=4, w4_wd=12, w5_g=4, w5_wd=4, k3_wd=(0, 3, 3, 11, 8), kvflag_at=20,
           k4_q=12, w7_q=8, hearly=6, p0b_late=1, nt='nt', xpre=1, w4_g_in=1, fin_sc='', k3stamps=0)
NST = [0]


def stamp(A, real=False):
    if not CFG['diag']:
        return
    i = NST[0]
    NST[0] += 1
    assert i < 32
    if real:
        A(f's_memrealtime s[66:67]\ns_waitcnt lgkmcnt(0)\nv_writelane_b32 v15, s66, {i}')
    else:
        A(f's_memtime s[66:67]\ns_memrealtime s[68:69]\ns_waitcnt lgkmcnt(0)\nv_writelane_b32 v15, s66, {i}\n'
          f'v_writelane_b32 v15, s68, {32 + i}')


def stamp_flush(A, seg):
    if not CFG['diag']:
        return
    A(f'''
    s_lshl_b32 s16, s2, 2
    s_add_u32 s16, s16, {W}
    s_mul_i32 s16, s16, 3
    s_add_u32 s16, s16, {seg}
    s_lshl_b32 s16, s16, 8
    s_add_u32 s16, s16, {DIAG}
    v_lshlrev_b32 v7, 2, v0
    buffer_store_dword v15, v7, s[8:11], s16 offen
    v_mov_b32 v15, 0
    ''')
    NST[0] = 0


def swap_add(A, r, t):
    A(f'''
    v_mov_b32 {v(t)}, {v(r)}
    v_permlane32_swap_b32 {v(t)}, {v(r)}
    v_add_f32 {v(r)}, {v(t)}, {v(r)}
    ''')


def stats_part(A, f, t, soff, sc, tok=None):
    A(f'v_pk_add_f32 {v(t, 2)}, {v(f, 2)}, {v(f + 2, 2)}')
    A(f'v_pk_add_f32 {v(t + 2, 2)}, {v(f + 4, 2)}, {v(f + 6, 2)}')
    for i in range(8, 16, 4):
        A(f'v_pk_add_f32 {v(t, 2)}, {v(t, 2)}, {v(f + i, 2)}')
        A(f'v_pk_add_f32 {v(t + 2, 2)}, {v(t + 2, 2)}, {v(f + i + 2, 2)}')
    A(f'v_pk_add_f32 {v(t, 2)}, {v(t, 2)}, {v(t + 2, 2)}')
    A(f'v_add_f32 {v(t)}, {v(t)}, {v(t + 1)}')
    swap_add(A, t, t + 2)
    A(f'v_mul_f32 {v(t)}, {f2u(1 / 32)}, {v(t)}')
    for i in range(0, 16, 2):
        A(f'v_pk_add_f32 {v(f + i, 2)}, {v(f + i, 2)}, {v(t, 2)} op_sel_hi:[1,0] neg_lo:[0,1] neg_hi:[0,1]')
    A(f'v_pk_mul_f32 {v(t + 2, 2)}, {v(f, 2)}, {v(f, 2)}')
    A(f'v_pk_mul_f32 {v(f, 2)}, {v(f + 2, 2)}, {v(f + 2, 2)}')
    for i in range(4, 16, 4):
        A(f'v_pk_fma_f32 {v(t + 2, 2)}, {v(f + i, 2)}, {v(f + i, 2)}, {v(t + 2, 2)}')
        A(f'v_pk_fma_f32 {v(f, 2)}, {v(f + i + 2, 2)}, {v(f + i + 2, 2)}, {v(f, 2)}')
    A(f'v_pk_add_f32 {v(t + 2, 2)}, {v(t + 2, 2)}, {v(f, 2)}')
    A(f'v_add_f32 {v(t + 1)}, {v(t + 2)}, {v(t + 3)}')
    swap_add(A, t + 1, t + 2)
    A(f'buffer_store_dwordx2 {v(t, 2)}, v12, s[8:11], {soff} offen {sc}', tok=tok)


def stats_load(A, dst, soff):
    for q in range(8):
        A(f'buffer_load_dwordx2 {v(dst + 2 * q, 2)}, v4, s[8:11], {soff} offen offset:{q * 256} sc1')


def stats_combine(r, mean, rstd, t, xf):
    L = []
    L.append(f'v_add_f32 {v(mean)}, {v(r)}, {v(r + 2)}')
    L.append(f'v_add_f32 {v(rstd)}, {v(r + 1)}, {v(r + 3)}')
    for q in range(2, 8):
        L.append(f'v_add_f32 {v(mean)}, {v(mean)}, {v(r + 2 * q)}')
        L.append(f'v_add_f32 {v(rstd)}, {v(rstd)}, {v(r + 2 * q + 1)}')
    L += [f'v_mov_b32 {v(t)}, {v(mean)}',
          f'v_permlane32_swap_b32 {v(t)}, {v(mean)}',
          f'v_add_f32 {v(mean)}, {v(t)}, {v(mean)}',
          f'v_mul_f32 {v(mean)}, {f2u(1 / 16)}, {v(mean)}']
    for q in range(8):
        L.append(f'v_sub_f32 {v(r + 2 * q)}, {v(r + 2 * q)}, {v(mean)}')
    L.append(f'v_mul_f32 {v(t)}, {v(r)}, {v(r)}')
    for q in range(1, 8):
        L.append(f'v_fmac_f32 {v(t)}, {v(r + 2 * q)}, {v(r + 2 * q)}')
    L += [f'v_fmamk_f32 {v(rstd)}, {v(t)}, {f2u(32.0)}, {v(rstd)}',
          f'v_mov_b32 {v(t)}, {v(rstd)}',
          f'v_permlane32_swap_b32 {v(t)}, {v(rstd)}',
          f'v_add_f32 {v(rstd)}, {v(t)}, {v(rstd)}',
          f'v_mov_b32 {v(t)}, {f2u(1e-5)}',
          f'v_fmamk_f32 {v(rstd)}, {v(rstd)}, {f2u(1 / 512)}, {v(t)}',
          f'v_rsq_f32 {v(rstd)}, {v(rstd)}',
          f'v_sub_f32 {v(t)}, 0, {v(mean)}',
          f'v_cvt_pk_bf16_f32 {v(xf + 1)}, {v(t)}, 0',
          f'v_lshlrev_b32 {v(t + 1)}, 16, {v(xf + 1)}',
          f'v_sub_f32 {v(t + 1)}, {v(t)}, {v(t + 1)}',
          f'v_cvt_pk_bf16_f32 {v(xf)}, {v(t)}, {v(t + 1)}',
          f'v_mov_b32 {v(xf + 3)}, 0',
          f'v_mov_b32 {v(xf + 2)}, 0']
    return L


def run(A, x):
    x() if callable(x) else A(x)


def emit_with_fill(A, main, fill, per):
    fill = list(fill)
    k = 0
    for g in main:
        for x in g:
            run(A, x)
        for _ in range(per):
            if k < len(fill):
                run(A, fill[k])
                k += 1
    for x in fill[k:]:
        run(A, x)


def poll(A, vaddr, soff, val, width=1, srd='s[8:11]', pre=None):
    lab = A.uid('poll')
    if pre:
        A(f'v_cmp_gt_u32 vcc, {val}, {pre}\ns_cbranch_vccz {lab}_x')
    A('s_mov_b32 s58, 0')
    A.label(lab)
    A(f's_add_u32 s58, s58, 1\ns_cmp_gt_u32 s58, 0x200000\ns_cbranch_scc1 {lab}_x')
    if width == 1:
        A(f'buffer_load_dword {pre or "v14"}, {vaddr}, {srd}, {soff} offen sc1')
    else:
        A(f'buffer_load_dwordx2 v[140:141], {vaddr}, {srd}, {soff} offen sc1\nv_min_u32 v14, v140, v141')
    A(f'v_cmp_gt_u32 vcc, {val}, {pre or "v14"}\ns_cbranch_vccnz {lab}')
    A.label(lab + '_x')


def presample(A, reg, vaddr, soff, srd='s[8:11]'):
    A(f'buffer_load_dword {reg}, {vaddr}, {srd}, {soff} offen sc1')


def even_fill(A, main, fill):
    fill = list(fill)
    k, n = 0, len(main)
    for i, g in enumerate(main):
        for x in g:
            run(A, x)
        while k < len(fill) * (i + 1) // n:
            run(A, fill[k])
            k += 1


def flag(A, addr, val, sc):
    A(f'''
    v_mov_b32 v14, {val}
    s_mov_b64 exec, 1
    buffer_store_dword v14, v13, s[8:11], {addr} offen {sc}
    s_mov_b64 exec, -1
    ''')


def arrive(A, off):
    lab = A.uid('arr')
    A(f'''
    s_barrier
    s_cmp_lg_u32 {W}, 0
    s_cbranch_scc1 {lab}
    v_mov_b32 v14, 1
    s_mov_b64 exec, 1
    buffer_atomic_add v14, v13, s[8:11], s33 offen offset:{off} sc1
    s_mov_b64 exec, -1
    ''')
    A.label(lab)


def lds_rd(dst, ad):
    return f'ds_read_b128 {dst}, {("v1", "v5", "v6")[ad >> 16]} offset:{ad & 65535}'


def dma_chunk(A, soff, slot, tok):
    A(f's_add_u32 m0, s31, {slot * 16 * KB}')
    for q in range(4):
        A(f'buffer_load_dwordx4 v1, s[8:11], {soff} offen offset:{q * 1024} sc1 lds', tok=tok)
    A(f's_add_u32 {soff}, {soff}, {16 * KB}')


class Dma:
    def __init__(self, A, name, soff, nslots=9):
        self.A, self.name, self.soff, self.i, self.ns = A, name, soff, 0, nslots

    def one(self):
        j, q = divmod(self.i, 4)
        A = self.A
        A(f's_add_u32 m0, s31, {(j % self.ns) * 16 * KB}')
        A(f'buffer_load_dwordx4 v1, s[8:11], {self.soff} offen offset:{q * 1024} sc1 lds', tok=f'{self.name}{j}')
        if q == 3:
            A(f's_add_u32 {self.soff}, {self.soff}, {16 * KB}')
        self.i += 1

    def emit(self, n, fresh=True):
        for k in range(n):
            j, q = divmod(self.i, 4)
            if (k == 0 and fresh) or q == 0:
                self.one()
            else:
                self.A(f'buffer_load_dwordx4 v1, s[8:11], {self.soff} offen offset:{q * 1024} sc1 lds',
                       tok=f'{self.name}{j}')
                if q == 3:
                    self.A(f's_add_u32 {self.soff}, {self.soff}, {16 * KB}')
                self.i += 1

    def upto(self, chunk):
        self.emit(4 * chunk - self.i)


def colsum_frag(A, src, soff, stride, ldsaddr, t):
    def load():
        for q in range(8):
            if q * stride < 4096:
                A(f'buffer_load_dword {v(src + q)}, v7, s[8:11], {soff} offen offset:{q * stride} sc1')
            else:
                if (q - 1) * stride < 4096:
                    A(f's_add_u32 s19, {soff}, {q * stride}')
                    q0 = q
                A(f'buffer_load_dword {v(src + q)}, v7, s[8:11], s19 offen offset:{(q - q0) * stride} sc1')

    def fin():
        for q in range(1, 8):
            A(f'v_add_f32 {v(src)}, {v(src)}, {v(src + q)}')
        swap_add(A, src, src + 1)
        A(f'''
        v_cvt_pk_bf16_f32 {v(t)}, {v(src)}, {v(src)}
        v_lshlrev_b32 {v(src + 1)}, 16, {v(t)}
        v_sub_f32 {v(src + 1)}, {v(src)}, {v(src + 1)}
        v_cvt_pk_bf16_f32 {v(t + 1)}, {v(src + 1)}, 0
        v_cmp_eq_u32 vcc, 0, v3
        v_mov_b32 {v(t + 2)}, 0
        v_mov_b32 {v(t + 3)}, 0
        v_cndmask_b32 {v(t)}, 0, {v(t)}, vcc
        v_cndmask_b32 {v(t + 1)}, 0, {v(t + 1)}, vcc
        v_add_u32 {v(src + 2)}, {ldsaddr}, v1
        ''')
        A(f'ds_write_b128 {v(src + 2)}, {v(t, 4)}', tok='xfw')
    return load, fin


def p0(A):
    A(f'''
    s_cmp_ge_u32 s2, 256
    s_cbranch_scc1 L_end
    s_load_dwordx4 s[60:63], s[0:1], 56
    s_load_dwordx2 s[8:9], s[0:1], 72
    s_load_dwordx4 s[32:35], s[0:1], 0
    s_load_dwordx2 s[40:41], s[0:1], 16
    s_load_dwordx4 s[44:47], s[0:1], 32
    s_load_dwordx2 s[52:53], s[0:1], 48
    ''')
    if CFG['diag']:
        A('v_mov_b32 v15, 0')
    A(f'''
    v_lshrrev_b32 v1, 6, v0
    v_and_b32 v0, 63, v0
    v_readfirstlane_b32 {W}, v1
    v_lshlrev_b32 v1, 4, v0
    s_getreg_b32 {XCC}, hwreg(HW_REG_XCC_ID, 0, 4)
    s_mov_b32 s10, {WS_BYTES}
    s_mov_b32 s11, 0x20000
    s_and_b32 s16, s2, 7
    s_lshr_b32 s17, s2, 3
    ''')
    if CFG['xmap'] == 8:
        A(f's_lshl_b32 s16, s16, 1\ns_lshr_b32 s18, s17, 4\ns_add_u32 {RB}, s16, s18\ns_and_b32 {C}, s17, 15')
    else:
        A(f's_and_b32 s18, s16, 3\ns_lshl_b32 s18, s18, 2\ns_and_b32 s19, s17, 3\ns_add_u32 {RB}, s18, s19\n'
          f's_lshr_b32 s16, s16, 2\ns_lshl_b32 s16, s16, 3\ns_lshr_b32 s17, s17, 2\ns_add_u32 {C}, s16, s17')
    A(f'''
    s_lshl_b32 {RB32}, {RB}, 2
    s_add_u32 {RB32}, {RB32}, {W}
    s_lshl_b32 {RB64}, {RB}, 1
    s_and_b32 s16, {C}, 1
    s_add_u32 {RB64}, {RB64}, s16
    s_lshr_b32 {CB}, {C}, 1
    s_lshr_b32 s16, {W}, 1
    s_and_b32 s17, {W}, 1
    s_lshl_b32 s18, {RB64}, 1
    s_add_u32 s18, s18, s16
    s_lshl_b32 s19, {CB}, 1
    s_add_u32 s19, s19, s17
    s_lshl_b32 {TOFF}, s18, 4
    s_add_u32 {TOFF}, {TOFF}, s19
    s_lshl_b32 {SOFF}, {TOFF}, 8
    s_lshl_b32 {TOFF}, {TOFF}, 11
    s_lshl_b32 {XFA}, s18, 7
    s_lshl_b32 s56, s19, 2
    s_add_u32 {XFA}, {XFA}, s56
    s_add_u32 {XFA}, {XFA}, {XFL}
    s_lshl_b32 s57, s18, 15
    s_lshl_b32 s56, s19, 6
    s_add_u32 s57, s57, s56
    s_lshl_b32 s31, {W}, 12
    s_lshl_b32 s16, s16, 10
    s_lshl_b32 s17, s17, 10
    v_add_u32 v8, s16, v1
    v_xor_b32 v9, 0x400, v8
    v_add_u32 v10, s17, v1
    v_xor_b32 v11, 0x400, v10
    v_and_b32 v2, 31, v0
    v_lshrrev_b32 v3, 5, v0
    v_lshlrev_b32 v12, 3, v2
    v_lshl_add_u32 v4, v3, 11, v12
    v_add_u32 v5, 0x10000, v1
    v_add_u32 v6, 0x20000, v1
    v_mov_b32 v13, 0
    s_mov_b32 {LAY}, 0
    v_lshlrev_b32 v16, 10, v2
    v_lshl_add_u32 v16, v3, 4, v16
    v_lshrrev_b32 v17, 2, v0
    v_and_b32 v18, 3, v0
    v_lshlrev_b32 v18, 4, v18
    v_mul_u32_u24 v19, 3072, v17
    v_add_u32 v19, v19, v18
    v_mul_u32_u24 v20, 3584, v17
    v_add_u32 v20, v20, v18
    v_lshl_add_u32 v21, v17, 10, v18
    s_min_u32 s59, {W}, 2
    s_waitcnt lgkmcnt(0)
    ''')
    stamp(A, True)
    stamp(A)
    A(f'''
    v_mov_b32 v28, -1
    v_mov_b32 v29, -1
    s_lshl_b32 s16, {C}, 4
    s_add_u32 s16, s16, {RB}
    s_mul_i32 s16, s16, 2176
    s_add_u32 s16, s16, {KVP}
    s_and_b32 s17, {W}, 1
    s_mul_i32 s17, s17, {KVS}
    s_add_u32 s18, s16, s17
    s_lshl_b32 s17, {W}, 9
    s_add_u32 s16, s16, s17
    s_add_u32 s17, s16, {KVS}
    v_lshlrev_b32 v30, 3, v0
    v_lshlrev_b32 v31, 2, v2
    buffer_store_dwordx2 v[28:29], v30, s[8:11], s16 offen sc1
    buffer_store_dwordx2 v[28:29], v30, s[8:11], s17 offen sc1
    buffer_store_dword v28, v31, s[8:11], s18 offen offset:2048 sc1
    ''')
    if CFG.get('codewarm', 1):
        A(f'''
        s_getpc_b64 s[18:19]
        s_lshl_b32 s16, {W}, 13
        v_lshl_add_u32 v30, v0, 7, s16
        global_load_dword v31, v30, s[18:19]
        ''')
    A(f'''
    s_cmp_lg_u32 s2, 0
    s_cbranch_scc1 L_noclr0
    v_mov_b32 v24, 0
    v_mov_b32 v25, 0
    v_mov_b32 v26, 0
    v_mov_b32 v27, 0
    s_mul_i32 s16, {W}, {5 * KB}
    s_add_u32 s16, s16, {FL}
    buffer_store_dwordx4 v[24:27], v1, s[8:11], s16 offen sc1
    buffer_store_dwordx4 v[24:27], v1, s[8:11], s16 offen offset:1024 sc1
    buffer_store_dwordx4 v[24:27], v1, s[8:11], s16 offen offset:2048 sc1
    buffer_store_dwordx4 v[24:27], v1, s[8:11], s16 offen offset:3072 sc1
    s_add_u32 s16, s16, 4096
    ''')
    A('buffer_store_dwordx4 v[24:27], v1, s[8:11], s16 offen sc1', tok='clr')
    A.label('L_noclr0')
    A(f'''
    s_mov_b64 s[36:37], s[34:35]
    s_mov_b32 s34, {2048 * KB}
    s_mov_b32 s35, 0x20000
    s_mov_b32 s38, {1536 * KB}
    s_mov_b32 s39, 0x20000
    s_mov_b32 s42, {512 * KB}
    s_mov_b32 s43, 0x20000
    s_mov_b64 s[48:49], s[46:47]
    s_mov_b32 s46, {1792 * KB}
    s_mov_b32 s47, 0x20000
    s_mov_b32 s50, {1792 * KB}
    s_mov_b32 s51, 0x20000
    s_mov_b32 s54, {1792 * KB}
    s_mov_b32 s55, 0x20000
    s_mov_b64 s[12:13], s[62:63]
    s_mov_b32 s14, 256
    s_mov_b32 s15, 0x20000
    buffer_load_dwordx4 {v(RES, 4)}, v16, s[32:35], s57 offen {CFG['nt']}
    buffer_load_dwordx4 {v(RES + 4, 4)}, v16, s[32:35], s57 offen offset:32 {CFG['nt']}
    s_mul_i32 s56, {W}, {9 * KB}
    s_add_u32 s56, s56, {L_RED}
    ''')
    A(f'''
    s_mul_i32 s16, {RB}, {32 * 3072}
    s_lshl_b32 s17, s59, 10
    s_add_u32 s16, s16, s17
    s_lshl_b32 s17, {C}, 6
    s_add_u32 s16, s16, s17
    s_mov_b32 m0, s56
    ''')
    A(f'buffer_load_dwordx4 v19, s[36:39], s16 offen {CFG["nt"]} lds')
    A(f's_add_u32 s16, s16, {16 * 3072}\ns_add_u32 m0, s56, 1024')
    A(f'buffer_load_dwordx4 v19, s[36:39], s16 offen {CFG["nt"]} lds', tok='pa')
    A('s_cmp_lg_u32 s2, 0\ns_cbranch_scc1 L_noclr')
    A.wait('clr')
    A(f'''
    s_lshl_b32 s16, {W}, 2
    v_mov_b32 v14, 1
    s_mov_b64 exec, 1
    buffer_store_dword v14, v13, s[12:15], s16 offen sc1
    s_mov_b64 exec, -1
    ''')
    A.label('L_noclr')
    def p0b_loads():
        A(f'''
    s_mul_i32 s16, {RB}, {32 * 3584}
    s_mul_i32 s17, {C}, 224
    s_add_u32 s16, s16, s17
    s_lshl_b32 s17, {W}, 6
    s_add_u32 s16, s16, s17
    ''')
        for u in range(2):
            A(f's_add_u32 m0, s56, {(2 + 2 * u) * KB}')
            A(f'buffer_load_dwordx4 v20, s[44:47], s16 offen {CFG["nt"]} lds')
            A(f's_add_u32 m0, s56, {(3 + 2 * u) * KB}')
            A(f'buffer_load_dwordx4 v20, s[48:51], s16 offen {CFG["nt"]} lds')
            if u == 0:
                A(f's_add_u32 s16, s16, {16 * 3584}')
        A(f'''
    s_lshl_b32 s16, {RB64}, 14
    s_lshl_b32 s17, {CB}, 7
    s_add_u32 s16, s16, s17
    s_and_b32 s18, {W}, 1
    s_lshl_b32 s18, s18, 6
    s_add_u32 s16, s16, s18
    s_add_u32 m0, s56, {6 * KB}
    ''')
        A(f'buffer_load_dwordx4 v21, s[40:43], s16 offen {CFG["nt"]} lds')
        A(f'''
    s_and_b32 s16, {C}, 1
    s_lshl_b32 s16, s16, 2
    s_add_u32 s16, s16, {W}
    s_min_u32 s64, s16, 6
    s_mul_i32 s16, {RB}, 7
    s_add_u32 s16, s16, s64
    s_lshl_b32 s16, s16, 14
    s_add_u32 s16, s16, s17
    s_add_u32 m0, s56, {7 * KB}
    ''')
        A(f'buffer_load_dwordx4 v21, s[52:55], s16 offen {CFG["nt"]} lds')
        A(f's_add_u32 s16, s16, 64\ns_add_u32 m0, s56, {8 * KB}')
        A(f'buffer_load_dwordx4 v21, s[52:55], s16 offen {CFG["nt"]} lds', tok='pb')
    A('v_and_b32 v25, 3, v0\nv_lshlrev_b32 v25, 2, v25')
    if not CFG['p0b_late']:
        p0b_loads()
    A(f'''
    v_bfe_u32 v17, v0, 2, 2
    v_lshl_add_u32 v17, v3, 2, v17
    v_lshlrev_b32 v17, 6, v17
    v_and_b32 v18, 3, v0
    v_lshl_add_u32 v17, v18, 3, v17
    v_add_u32 v17, s56, v17
    v_bfe_u32 v18, v0, 4, 1
    v_lshl_add_u32 v22, v18, 5, v17
    v_lshl_add_u32 v23, v18, 10, v17
    s_mov_b32 s65, 0x3f803f80
    s_mov_b32 s19, 0xffff0000
    ''')
    for f in range(2):
        r = RES + 4 * f
        A(f'v_permlane32_swap_b32 {v(r)}, {v(r + 2)}\nv_permlane32_swap_b32 {v(r + 1)}, {v(r + 3)}')
    stamp(A)
    A(f's_add_u32 s16, {TOFF}, {X[0]}\ns_add_u32 s17, {SOFF}, {ST[0]}')
    A(f'buffer_store_dwordx4 {v(RES, 4)}, v1, s[8:11], s16 offen sc1')
    A(f'buffer_store_dwordx4 {v(RES + 4, 4)}, v1, s[8:11], s16 offen offset:1024 sc1')
    for d in range(8):
        A(f'v_lshlrev_b32 {v(32 + 2 * d)}, 16, {v(RES + d)}\nv_and_b32 {v(33 + 2 * d)}, s19, {v(RES + d)}')
    stats_part(A, 32, 28, 's17', 'sc1')

    def tr(dst, base, o):
        A(f'ds_read_b64_tr_b16 {v(dst, 2)}, {base} offset:{o}\nds_read_b64_tr_b16 {v(dst + 2, 2)}, {base} offset:{o + 512}')

    def csum(acc, regs):
        A(f'v_mov_b32 {v(acc)}, 0\nv_mov_b32 {v(acc + 1)}, 0')
        for i, r in enumerate(regs):
            A(f'v_dot2_f32_bf16 {v(acc + (i & 1))}, {v(r)}, s65, {v(acc + (i & 1))}')
        A(f'v_add_f32 {v(acc)}, {v(acc)}, {v(acc + 1)}')
        swap_add(A, acc, acc + 1)
    A.wait('pa')
    tr(32, 'v22', 0)
    tr(36, 'v22', 1024)
    A(f'''
    s_lshl_b32 s16, {RB}, 2
    s_add_u32 s16, s16, s59
    s_sub_u32 s16, s16, 1
    s_lshl_b32 s17, {RB}, 1
    s_add_u32 s17, s17, 64
    s_cmp_eq_u32 s59, 0
    s_cselect_b32 s16, s17, s16
    s_cselect_b32 s18, 1, 2
    s_lshl_b32 s18, s18, 10
    s_mul_i32 s17, {C}, 96
    s_add_u32 s16, s16, s17
    s_lshl_b32 s16, s16, 10
    s_add_u32 s16, s16, {WQKV}
    s_add_u32 s18, s18, s16
    buffer_store_dwordx4 v[32:35], v1, s[8:11], s16 offen sc1
    buffer_store_dwordx4 v[36:39], v1, s[8:11], s18 offen sc1
    ''')
    csum(40, range(32, 40))
    A(f'''
    s_lshl_b32 s16, {C}, 4
    s_add_u32 s16, s16, {RB}
    s_mul_i32 s17, s16, 384
    s_lshl_b32 s18, s59, 7
    s_add_u32 s17, s17, s18
    s_add_u32 s17, s17, {CSQ}
    v_lshlrev_b32 v24, 2, v2
    ''')
    A('buffer_store_dword v40, v24, s[8:11], s17 offen sc1', tok='pas')
    stamp(A)
    poll(A, 'v25', '0', '1', srd='s[12:15]')
    stamp(A)
    if CFG['p0b_late']:
        p0b_loads()
    A.wait('pas')
    stamp(A)
    A(f'''
    s_lshl_b32 s16, {C}, 8
    s_add_u32 s33, s16, {CFL}
    s_or_b32 s17, {XCC}, 16
    ''')
    flag(A, XFA, 's17', 'sc1')
    arrive(A, 0)
    A.wait('pb')
    stamp(A)
    for u in range(2):
        for t in range(2):
            tr(32 + 8 * t + 4 * u, 'v23', (2 + 2 * u) * KB + 32 * t)
    tr(48, 'v22', 6 * KB)
    tr(52, 'v22', 7 * KB)
    tr(56, 'v22', 8 * KB)
    A(f'''
    s_lshl_b32 s16, {C}, 4
    s_add_u32 s16, s16, {RB}
    s_lshl_b32 s16, s16, 10
    s_lshl_b32 s17, {W}, 8
    s_add_u32 s16, s16, s17
    s_add_u32 s34, s16, {CSG}
    ''')
    for t in range(2):
        A(f'''
        s_lshl_b32 s16, {W}, 1
        s_add_u32 s16, s16, {t}
        s_mul_i32 s17, {RB}, 6
        s_add_u32 s17, s17, s16
        s_lshl_b32 s18, s16, 5
        s_lshl_b32 s19, {RB}, 1
        s_add_u32 s18, s18, s19
        s_cmp_lt_u32 s16, 3
        s_cselect_b32 s17, s17, s18
        s_cselect_b32 s18, 3, 1
        s_lshl_b32 s18, s18, 10
        s_mul_i32 s19, {C}, 224
        s_add_u32 s17, s17, s19
        s_lshl_b32 s17, s17, 10
        s_add_u32 s17, s17, {WGU}
        s_add_u32 s18, s18, s17
        ''')
        if t == 1:
            A(f's_cmp_eq_u32 {W}, 3\ns_cbranch_scc1 L_notile')
        A(f'buffer_store_dwordx4 {v(32 + 8 * t, 4)}, v1, s[8:11], s17 offen sc1')
        A(f'buffer_store_dwordx4 {v(36 + 8 * t, 4)}, v1, s[8:11], s18 offen sc1')
        csum(60 + 2 * t, range(32 + 8 * t, 40 + 8 * t))
        A(f'buffer_store_dword {v(60 + 2 * t)}, v24, s[8:11], s34 offen offset:{128 * t} sc1')
    A.label('L_notile')
    A(f'''
    s_lshl_b32 s16, {CB}, 5
    s_add_u32 s16, s16, {RB64}
    s_lshl_b32 s16, s16, 1
    s_and_b32 s17, {W}, 1
    s_add_u32 s16, s16, s17
    s_lshl_b32 s16, s16, 10
    s_add_u32 s16, s16, {WO}
    buffer_store_dwordx4 v[48:51], v1, s[8:11], s16 offen sc1
    s_mul_i32 s16, {CB}, 112
    s_lshr_b32 s17, {RB}, 2
    s_mul_i32 s17, s17, 28
    s_add_u32 s16, s16, s17
    s_lshl_b32 s17, s64, 2
    s_add_u32 s16, s16, s17
    s_and_b32 s17, {RB}, 3
    s_add_u32 s16, s16, s17
    s_lshl_b32 s16, s16, 11
    s_add_u32 s16, s16, {WD}
    buffer_store_dwordx4 v[52:55], v1, s[8:11], s16 offen sc1
    ''')
    A('buffer_store_dwordx4 v[56:59], v1, s[8:11], s16 offen offset:1024 sc1', tok='pbs')
    stamp(A)
    A(f's_lshl_b32 s35, {RB32}, 7\ns_add_u32 s35, s35, {XFL}\nv_and_b32 v25, 15, v0\nv_lshlrev_b32 v25, 2, v25')
    presample(A, 'v26', 'v25', 's35')
    presample(A, 'v27', 'v13', 's33')
    poll(A, 'v25', 's35', '16', pre='v26')
    stamp(A)
    A.wait('pbs')
    arrive(A, 128)
    if CFG['xpre']:
        k1_xpro(A)
    poll(A, 'v13', 's33', '16', pre='v27')
    stamp(A)
    A(f'''
    s_mul_i32 s16, {C}, {16 * 384}
    s_lshl_b32 s17, s59, 7
    s_add_u32 s16, s16, s17
    s_add_u32 s16, s16, {CSQ}
    v_mul_u32_u24 v7, {8 * 384}, v3
    v_add_u32 v7, v7, v24
    s_add_u32 s17, s59, 2
    s_cmp_ge_u32 s17, 3
    s_cselect_b32 s18, 3, 0
    s_sub_u32 s17, s17, s18
    s_lshl_b32 s17, s17, 10
    s_add_u32 s17, s17, {L_XQ}
    ''')
    ld, fin = colsum_frag(A, 32, 's16', 384, 's17', 40)
    ld()
    wqkv_start(A).upto(2)
    fin()
    A.wait('q0')
    A(f'v_and_b32 v26, 15, v26\nv_cmp_ne_u32 vcc, {XCC}, v26')
    stamp(A)
    if CFG.get('dbgstamp'):
        A(f'''
        s_cmp_lg_u32 s2, {CFG['dbgstamp']}
        s_cbranch_scc1 L_nodbg
        s_cmp_lg_u32 {W}, 0
        s_cbranch_scc1 L_nodbg
        v_readlane_b32 s16, v15, 1
        v_subrev_u32 v16, s16, v15
        v_lshlrev_b32 v7, 2, v0
        s_mov_b64 exec, 0xfff
        buffer_store_dword v16, v7, s[12:15], 0 offen offset:16
        s_mov_b64 exec, -1
        ''')
        A.label('L_nodbg')
    stamp_flush(A, 0)
    if CFG['force_safe'] or CFG['xmap'] != 8:
        A('s_branch L_safe' + '_x' * CFG['xpre'])
    else:
        A('s_cbranch_vccnz L_safe' + '_x' * CFG['xpre'])
        A('s_branch L_fast' + '_x' * CFG['xpre'])


def wqkv_start(A):
    A(f's_mul_i32 s32, {C}, {96 * KB}\ns_add_u32 s32, s32, s31\ns_add_u32 s32, s32, {WQKV}')
    return Dma(A, 'q', 's32')


BC0 = 'op_sel_hi:[1,0]'
BC1 = 'op_sel:[0,1,0] op_sel_hi:[1,1,1]'


def wd_reg(i):
    return a(128 + 4 * i, 4) if i < 32 else v(160 + 4 * (i - 32), 4)


class St:
    pass


def wdload(A, S, n=1):
    for _ in range(n):
        if not S.wdq:
            return
        i = S.wdq.pop(0)
        st, c = i >> 1, i & 1
        base = 4096 * (st >> 1)
        if base != S.wdbase:
            A(f's_add_u32 s36, s36, {base - S.wdbase}' if base > S.wdbase else f's_sub_u32 s36, s36, {S.wdbase - base}')
            S.wdbase = base
        A(f'buffer_load_dwordx4 {wd_reg(i)}, {("v10", "v11")[c]}, s[8:11], s36 offen offset:{(st & 1) * 2048} sc1')


def xload1(A, kg):
    A(f'buffer_load_dwordx4 {a(4 * kg, 4)}, v1, s[8:11], s34 offen offset:{(kg & 3) * 1024} sc1')
    if kg & 3 == 3:
        A('s_add_u32 s34, s34, 4096')


def k1_xpro(A):
    A(f'''
    s_lshl_b32 s34, {LAY}, 22
    s_lshl_b32 s16, {RB32}, 15
    s_add_u32 s34, s34, s16
    s_add_u32 s34, s34, {XB}
    s_lshl_b32 s35, {LAY}, 19
    s_lshl_b32 s16, {RB32}, 12
    s_add_u32 s35, s35, s16
    s_add_u32 s35, s35, {SB}
    ''')
    for kg in range(CFG['xdepth']):
        xload1(A, kg)
        if kg == 3:
            stats_load(A, 112, 's35')


def if_layer(A, lay, fn):
    lab = A.uid('lay')
    A(f's_cmp_lg_u32 {LAY}, {lay}\ns_cbranch_scc1 {lab}')
    fn()
    A.label(lab)


def if_else(A, fn0, fn1):
    lab = A.uid('lay')
    A(f's_cmp_lg_u32 {LAY}, 0\ns_cbranch_scc1 {lab}_1')
    fn0()
    A(f's_branch {lab}_2')
    A.label(lab + '_1')
    fn1()
    A.label(lab + '_2')


def k1(A, m, sc, S):
    KT, VT, QT = 16, 32, 48
    WB, STR, MEAN, RSTD, T, XF, RL = 88, 112, 128, 129, 130, 132, 144
    P = 88
    D = CFG['xdepth']
    xload = lambda kg: xload1(A, kg)

    def woload(i):
        hh, c = i >> 1, i & 1
        A(f'buffer_load_dwordx4 {a(128 + 8 * hh + 4 * c, 4)}, {("v10", "v11")[c]}, s[8:11], s36 offen '
          f'offset:{(hh & 1) * 2048} sc1')
        if i & 3 == 3:
            A('s_add_u32 s36, s36, 4096')
    k1_xpro(A)
    A.label(m + '_x')
    Q = Dma(A, 'q', 's32')
    Q.i = 8

    def l0_chunk(j):
        lab = A.uid('l0')
        A(f's_cmp_lg_u32 {LAY}, 0\ns_cbranch_scc1 {lab}')
        Q.upto(j + 1)
        A.label(lab)
    NB, LAG = 6, 3
    buf = lambda p: v(WB + 4 * (p % NB), 4)
    stat = stats_combine(STR, MEAN, RSTD, T, XF)
    stat += [f's_lshl_b32 s16, {W}, 7', f's_add_u32 s16, s16, {L_RS}', f'v_lshl_add_u32 v7, v2, 2, s16',
             f'ds_write_b32 v7, {v(RSTD)}', f'v_lshl_add_u32 v7, v3, 4, s16']
    stat += [f'ds_read_b128 {v(STR + 4 * j, 4)}, v7 offset:{32 * j}' for j in range(4)]
    stat += [f's_mov_b32 s38, {f2u(LOG2E)}', f'v_mul_f32 {v(MEAN)}, s38, {v(RSTD)}',
             f's_mov_b32 s40, {f2u(1e-6)}', f's_mov_b32 s41, {f2u(1e-6)}']
    addr = f'''
    v_bfe_u32 v7, v0, 4, 1
    v_lshlrev_b32 v136, 8, v7
    v_lshlrev_b32 v137, 4, v7
    v_bfe_u32 v7, v0, 2, 1
    v_lshlrev_b32 v138, 3, v7
    v_bfe_u32 v7, v0, 3, 1
    v_lshl_add_u32 v138, v7, 2, v138
    v_and_b32 v7, 3, v0
    v_add_u32 v138, v138, v7
    s_mul_i32 s16, {W}, 2176
    s_add_u32 s16, s16, {L_RED}
    v_add_u32 v136, v136, v138
    v_lshl_add_u32 v136, v3, 6, v136
    v_lshl_add_u32 v136, v136, 2, s16
    v_add_u32 v137, v137, v138
    v_lshl_add_u32 v137, v137, 2, s16
    s_lshl_b32 s16, {W}, 9
    v_lshl_add_u32 v138, v0, 3, s16
    v_add_u32 v139, {L_RED}, v138
    s_lshl_b32 s16, {W}, 5
    s_add_u32 s16, s16, 2048
    v_and_b32 v7, 7, v0
    v_lshl_add_u32 v142, v7, 2, s16
    v_add_u32 v143, {L_RED}, v142
    s_mul_i32 s39, {LAY}, {KVS}
    s_mul_i32 s16, {C}, {16 * 2176}
    s_add_u32 s39, s39, s16
    s_add_u32 s39, s39, {KVP}
    s_mul_i32 s16, {RB}, 2176
    s_add_u32 s37, s39, s16
    s_lshl_b32 s36, {CB}, 16
    s_lshl_b32 s16, {W}, 14
    s_add_u32 s36, s36, s16
    s_add_u32 s36, s36, {WO}
    v_and_b32 v7, 16, v0
    v_cmp_eq_u32 s[64:65], 0, v7
    '''.strip().split('\n')
    stat += [f'v_mul_f32 {v(RL + i)}, s38, {v(STR + i)}' for i in range(16)]
    groups = []
    for p in range(66 + LAG):
        g = []
        if p % 16 == 0 and p < 64:
            j = p // 16
            g.append(lambda j=j: (A.wait(f'q{j}', 'xfw'), A('s_barrier')))
        if p < 66:
            g.append(lds_rd(buf(p), p * KB if p < 64 else L_XQ + (p - 64) * KB))
        pre, g = (g, []) if p >= LAG else ([], g)
        if p >= LAG:
            q = p - LAG
            kg, t = q >> 1, q & 1
            xf = a(4 * kg, 4) if kg < 32 else v(XF, 4)
            acc = v((KT, VT)[t], 16)
            g.append(f'{MF} {acc}, {xf}, {buf(q)}, {"0" if kg == 0 else acc}')
            g += pre
            if t == 1 and kg + D < 32:
                g.append(lambda kg=kg: xload(kg + D))
            if t == 1 and kg in (1, 7):
                g.append(lambda j=2 + kg // 7: l0_chunk(j))
            if t == 1 and 32 <= kg + D < 40 and (kg + D) % 2 == 0:
                n = (kg + D - 32) // 2
                g.append(lambda n=n: if_else(A, lambda: Q.emit(2), lambda: [woload(i) for i in (2 * n, 2 * n + 1)]))
        groups.append(g)
    emit_with_fill(A, groups[:2 + LAG], [], 0)
    stamp(A)
    even_fill(A, groups[2 + LAG:20], addr)
    even_fill(A, groups[20:64], stat)
    emit_with_fill(A, groups[64:], [], 0)
    Q.upto(6)
    stamp(A)
    for i in range(0, 16, 2):
        t = T if i & 2 else XF + 8
        A(f'''
        v_pk_mul_f32 {v(t, 2)}, {v(KT + i, 2)}, {v(RL + i, 2)}
        v_pk_fma_f32 {v(KT + i, 2)}, {v(KT + i, 2)}, {v(STR + i, 2)}, s[40:41]
        v_exp_f32_e64 {v(t)}, {v(t)} clamp
        v_exp_f32_e64 {v(t + 1)}, {v(t + 1)} clamp
        v_pk_mul_f32 {v(VT + i, 2)}, {v(VT + i, 2)}, {v(STR + i, 2)}
        v_max_f32 {v(KT + i)}, s40, {v(KT + i)}
        v_max_f32 {v(KT + i + 1)}, s40, {v(KT + i + 1)}
        v_cvt_pk_bf16_f32 {v(P + 16 + i // 2)}, {v(VT + i)}, {v(VT + i + 1)}
        v_pk_add_f32 {v(KT + i, 2)}, {v(KT + i, 2)}, {v(t, 2)}
        v_cvt_pk_bf16_f32 {v(P + 8 + i // 2)}, {v(KT + i)}, {v(KT + i + 1)}
        ''')
        if i == 6:
            A(f'{MF} {v(64, 16)}, {v(P + 16, 4)}, {v(P + 8, 4)}, 0')
    D2 = 64
    A(f'{MF} {v(D2, 16)}, {v(P + 20, 4)}, {v(P + 12, 4)}, {v(D2, 16)}')
    for i in range(4, 16, 4):
        A(f'v_pk_add_f32 {v(KT, 2)}, {v(KT, 2)}, {v(KT + i, 2)}\n'
          f'v_pk_add_f32 {v(KT + 2, 2)}, {v(KT + 2, 2)}, {v(KT + i + 2, 2)}')
    A(f'v_pk_add_f32 {v(KT, 2)}, {v(KT, 2)}, {v(KT + 2, 2)}\nv_add_f32 {v(KT)}, {v(KT)}, {v(KT + 1)}')
    swap_add(A, KT, T)
    A(f'ds_write_b32 v137, {v(KT)} offset:2048')
    for i in range(8):
        A(f'v_cndmask_b32 {v(KT + 1 + i)}, {v(D2 + 8 + i)}, {v(D2 + i)}, s[64:65]')
        A(f'ds_write_b32 v136, {v(KT + 1 + i)} offset:{(8 * (i >> 2) + (i & 3)) * 64}', tok='kvw')
    A.wait('kvw', 'q4', 'q5')
    A('s_barrier')
    for w in range(4):
        A(f'ds_read_b64 {v(KT + 2 * w, 2)}, v139 offset:{w * 2176}')
        A(f'ds_read_b32 {v(KT + 8 + w)}, v143 offset:{w * 2176}')
    rq = lambda p: lds_rd(buf(p), (64 + p) * KB if p < 32 else L_XQ + 2 * KB)
    A(rq(0))
    A(rq(1))
    A(rq(2))
    A(f'''
    v_pk_add_f32 {v(KT, 2)}, {v(KT, 2)}, {v(KT + 2, 2)}
    v_add_f32 {v(KT + 8)}, {v(KT + 8)}, {v(KT + 9)}
    v_pk_add_f32 {v(KT + 4, 2)}, {v(KT + 4, 2)}, {v(KT + 6, 2)}
    v_add_f32 {v(KT + 10)}, {v(KT + 10)}, {v(KT + 11)}
    v_pk_add_f32 {v(KT, 2)}, {v(KT, 2)}, {v(KT + 4, 2)}
    v_add_f32 {v(KT + 8)}, {v(KT + 8)}, {v(KT + 10)}
    v_min_u32 {v(KT)}, -2, {v(KT)}
    v_min_u32 {v(KT + 1)}, -2, {v(KT + 1)}
    v_min_u32 {v(KT + 8)}, -2, {v(KT + 8)}
    buffer_store_dwordx2 {v(KT, 2)}, v138, s[8:11], s37 offen sc1
    buffer_store_dword {v(KT + 8)}, v142, s[8:11], s37 offen sc1
    ''')
    stamp(A)
    def l0_wo():
        A(f's_and_b32 s42, s33, {0xffffffff ^ 256}\nv_and_b32 v7, 1, v0\nv_lshlrev_b32 v7, 8, v7\nv_add_u32 v7, 128, v7')
        poll(A, 'v7', 's42', '16')
        for i in range(16):
            woload(i)
    assert CFL % 512 == 0
    if_else(A, l0_wo, lambda: [woload(i) for i in range(8, 16)])
    A(f's_mul_i32 s32, {C}, {224 * KB}\ns_add_u32 s32, s32, s31\ns_add_u32 s32, s32, {WGU}')
    G = S.G = Dma(A, 'g', 's32')
    fill = [lambda: G.emit(1)] * CFG['w1_g']
    addr2 = f'''
    v_mul_u32_u24 v136, 2176, v3
    v_lshl_add_u32 v136, v2, 4, v136
    v_lshrrev_b32 v137, 2, v0
    v_mul_u32_u24 v137, 2176, v137
    v_and_b32 v138, 3, v0
    v_lshl_add_u32 v137, v138, 3, v137
    s_lshl_b32 s17, {W}, 9
    s_add_u32 s37, s39, s17
    s_lshl_b32 s17, {W}, 5
    s_add_u32 s44, s39, s17
    s_lshr_b32 s16, {W}, 1
    s_lshl_b32 s17, s16, 6
    s_lshl_b32 s18, {W}, 9
    s_add_u32 s17, s17, s18
    s_add_u32 s17, s17, {L_KV}
    v_lshl_add_u32 v142, v2, 4, s17
    s_mul_i32 s16, s16, 1088
    s_and_b32 s17, {W}, 1
    s_lshl_b32 s17, s17, 5
    s_add_u32 s16, s16, s17
    s_add_u32 s16, s16, {L_KV + 1024}
    v_lshl_add_u32 v143, v138, 3, s16
    v_min_u32 v138, 16, v2
    v_lshlrev_b32 v138, 6, v138
    v_lshl_add_u32 v138, v3, 5, v138
    v_add_u32 v138, {L_KV}, v138
    s_lshr_b32 s16, {RB32}, 1
    s_lshl_b32 s17, s16, 7
    s_lshl_b32 s16, s16, 4
    s_add_u32 s16, s16, {C}
    s_lshl_b32 s16, s16, 12
    s_and_b32 s18, {W}, 1
    s_lshl_b32 s19, s18, 10
    s_add_u32 s16, s16, s19
    s_lshl_b32 s19, {LAY}, 21
    s_add_u32 s16, s16, s19
    s_add_u32 s45, s16, {OB}
    s_lshl_b32 s19, {C}, 1
    s_add_u32 s18, s18, s19
    s_lshl_b32 s18, s18, 2
    s_add_u32 s47, s17, s18
    s_add_u32 s46, s47, {OFL}
    s_add_u32 s47, s47, {HFL}
    '''.strip().split('\n')
    qg = []
    for p in range(33):
        g = []
        xf = a(4 * p, 4) if p < 32 else v(XF, 4)
        g.append(f'{MF} {v(QT, 16)}, {buf(p)}, {xf}, {"0" if p == 0 else v(QT, 16)}')
        if p + 3 < 33:
            g.append(rq(p + 3))
        if p < len(fill):
            g.append(fill[p])
        qg.append(g)
    even_fill(A, qg, addr2)
    for x in fill[33:]:
        run(A, x)
    stamp(A)
    for i in range(0, 16, 2):
        t = T if i & 2 else XF + 8
        A(f'''
        v_pk_mul_f32 {v(t, 2)}, {v(QT + i, 2)}, {v(MEAN, 2)} {BC0}
        v_pk_fma_f32 {v(QT + i, 2)}, {v(QT + i, 2)}, {v(MEAN, 2)}, s[40:41] {BC1}
        v_exp_f32_e64 {v(t)}, {v(t)} clamp
        v_exp_f32_e64 {v(t + 1)}, {v(t + 1)} clamp
        v_max_f32 {v(QT + i)}, s40, {v(QT + i)}
        v_max_f32 {v(QT + i + 1)}, s40, {v(QT + i + 1)}
        v_pk_add_f32 {v(QT + i, 2)}, {v(QT + i, 2)}, {v(t, 2)}
        v_cvt_pk_bf16_f32 {v(P + i // 2)}, {v(QT + i)}, {v(QT + i + 1)}
        ''')
    stamp(A)
    A('s_mov_b32 s58, 0')
    A.label(m + '_kvr')
    A('s_mov_b32 s43, s37')
    A('buffer_load_dwordx2 v[48:49], v137, s[8:11], s44 offen offset:2048 sc1')
    for i in range(8):
        A(f'buffer_load_dwordx4 {v(16 + 4 * i, 4)}, v136, s[8:11], s43 offen sc1')
        if i < 7:
            A(f's_add_u32 s43, s43, {2 * 2176}')
    A('s_add_u32 s58, s58, 1')
    A('v_max_u32 v50, v48, v49')
    for i in range(16):
        A(f'v_max3_u32 v50, v50, {v(16 + 2 * i)}, {v(17 + 2 * i)}')
    A(f'''
    v_cmp_eq_u32 vcc, -1, v50
    s_cmp_gt_u32 s58, 0x100000
    s_cbranch_scc1 {m}_kvx
    s_cbranch_vccnz {m}_kvr
    ''')
    A.label(m + '_kvx')
    stamp(A)
    G.emit(CFG['w2_g'])
    assert G.i <= 16
    for ror in (4, 8):
        for j in range(2):
            A(f'v_add_f32_dpp {v(50 + j)}, {v(48 + j)}, {v(48 + j)} row_ror:{ror} row_mask:0xf bank_mask:0xf')
        A('v_mov_b32 v48, v50\nv_mov_b32 v49, v51')
    for sw in ('16', '32'):
        A(f'v_permlane{sw}_swap_b32 v50, v48\nv_permlane{sw}_swap_b32 v51, v49\nv_pk_add_f32 v[48:49], v[50:51], v[48:49]')
        if sw == '16':
            A('v_mov_b32 v50, v48\nv_mov_b32 v51, v49')
    A('ds_write_b64 v143, v[48:49]')
    for i in range(1, 8):
        for j in (0, 2):
            A(f'v_pk_add_f32 {v(16 + j, 2)}, {v(16 + j, 2)}, {v(16 + 4 * i + j, 2)}')
    for j in range(4):
        A(f'v_mov_b32 {v(20 + j)}, {v(16 + j)}')
    for j in range(4):
        A(f'v_permlane32_swap_b32 {v(20 + j)}, {v(16 + j)}')
    for j in (0, 2):
        A(f'v_pk_add_f32 {v(16 + j, 2)}, {v(20 + j, 2)}, {v(16 + j, 2)}')
    A('ds_write_b128 v142, v[16:19]', tok='kvt')
    A.wait('kvt')
    A('s_barrier')
    for f in range(2):
        A(f'ds_read_b128 {v(16 + 8 * f, 4)}, v138 offset:{f * 1088}\n'
          f'ds_read_b128 {v(20 + 8 * f, 4)}, v138 offset:{f * 1088 + 16}')
    for f in range(2):
        k = 16 + 8 * f
        for d in range(4):
            A(f'v_cvt_pk_bf16_f32 {v(k + d)}, {v(k + 2 * d)}, {v(k + 2 * d + 1)}')
        A(f'{MF} {v(32 + 16 * f, 16)}, {v(k, 4)}, {v(P + 4 * f, 4)}, 0')
    A(f'''
    s_lshl_b32 s16, {RB64}, 7
    s_lshl_b32 s17, {W}, 5
    s_add_u32 s51, s16, s17
    s_add_u32 s55, s51, {OFL}
    s_add_u32 s51, s51, {HFL}
    v_and_b32 v7, 7, v0
    v_lshlrev_b32 v139, 2, v7
    s_add_u32 s56, {LAY}, 1
    ''')
    for f in range(2):
        d = 32 + 16 * f
        A(f'v_add_f32 {v(T)}, s40, {v(d + 8)}\nv_rcp_f32 {v(T)}, {v(T)}')
        for i in range(0, 8, 2):
            A(f'v_pk_mul_f32 {v(d + i, 2)}, {v(d + i, 2)}, {v(T, 2)} {BC0}')
        for i in range(4):
            A(f'v_cvt_pk_bf16_f32 {v(P + 8 + 4 * f + i)}, {v(d + 2 * i)}, {v(d + 2 * i + 1)}')
        A(f'buffer_store_dwordx4 {v(P + 8 + 4 * f, 4)}, v1, s[8:11], s45 offen offset:{f * 2048} {sc.o}', tok='os')
    stamp(A)
    A(f's_cmp_lg_u32 {LAY}, 0\ns_cbranch_scc1 {m}_nocs0')
    A(f'''
    s_lshl_b32 s16, {C}, 14
    s_lshl_b32 s17, {W}, 8
    s_add_u32 s16, s16, s17
    s_add_u32 s16, s16, {CSG}
    s_add_u32 s17, s16, 128
    v_lshlrev_b32 v7, 2, v2
    v_lshl_add_u32 v7, v3, 13, v7
    s_lshl_b32 s48, {W}, 11
    s_add_u32 s48, s48, {L_XG}
    s_add_u32 s49, s48, 1024
    ''')
    l0, f0 = colsum_frag(A, 16, 's16', 1024, 's48', 32)
    l1, f1 = colsum_frag(A, 24, 's17', 1024, 's49', 36)
    l0()
    l1()
    A.label(m + '_nocs0')
    G.emit(CFG['w3_g'])
    A(f'''
    s_lshl_b32 s34, {RB64}, 16
    s_lshl_b32 s17, {W}, 14
    s_add_u32 s34, s34, s17
    s_lshl_b32 s17, {LAY}, 21
    s_add_u32 s34, s34, s17
    s_add_u32 s34, s34, {OB}
    s_mul_i32 s36, {CB}, {224 * KB}
    s_mul_i32 s16, {W}, {56 * KB}
    s_add_u32 s36, s36, s16
    s_add_u32 s36, s36, {WD}
    ''')
    A.wait('os')
    flag(A, 's46', 's56', sc.f)
    stamp(A)
    A(f's_cmp_lg_u32 {LAY}, 0\ns_cbranch_scc1 {m}_nocs')
    f0()
    A(f's_cmp_eq_u32 {W}, 3\ns_cbranch_scc1 {m}_nocs')
    f1()
    A.label(m + '_nocs')


def reduce_epilogue(A, m):
    T = 88
    for sg in (3, 2, 1):
        A(f'''
        s_xor_b32 s16, {W}, {sg}
        s_mul_i32 s16, s16, {3 * 4096}
        s_add_u32 s16, s16, {L_RED + (sg - 1) * 4096}
        v_add_u32 {v(T + 4 + sg)}, s16, v1
        ''')
    A(f's_mul_i32 s16, {W}, {3 * 4096}\ns_add_u32 s16, s16, {L_RED}\nv_add_u32 v7, s16, v1\ns_mov_b32 s17, 0xffff0000')
    for d in range(8):
        A(f'v_lshlrev_b32 {v(96 + 2 * d)}, 16, {v(RES + d)}\nv_and_b32 {v(97 + 2 * d)}, s17, {v(RES + d)}')


def reduce_finish(A, m):
    T = 88
    for sg in (3, 2, 1):
        for jj in range(4):
            A(f'ds_write_b128 {v(T + 4 + sg)}, {v(ACC + 16 * sg + 4 * jj, 4)} offset:{jj * 1024}', tok='red')
    for d in range(8):
        A(f'v_pk_add_f32 {v(ACC + 2 * d, 2)}, {v(ACC + 2 * d, 2)}, {v(96 + 2 * d, 2)}')
    A.wait('red')
    A('s_barrier')
    for jj in range(4):
        for sg in range(1, 4):
            A(f'ds_read_b128 {v(ACC + 16 * sg + 4 * jj, 4)}, v7 offset:{(sg - 1) * 4096 + jj * 1024}')
    for jj in range(4):
        for sg in range(1, 4):
            for i in range(4 * jj, 4 * jj + 4, 2):
                A(f'v_pk_add_f32 {v(ACC + i, 2)}, {v(ACC + i, 2)}, {v(ACC + 16 * sg + i, 2)}')
        for d in range(2 * jj, 2 * jj + 2):
            A(f'v_cvt_pk_bf16_f32 {v(RES + d)}, {v(ACC + 2 * d)}, {v(ACC + 2 * d + 1)}')


def publish_addr(j_off):
    return f'''
    s_lshl_b32 s48, {LAY}, 22
    s_add_u32 s48, s48, {TOFF}
    s_add_u32 s48, s48, {XB + j_off * 2048 * KB}
    s_lshl_b32 s49, {LAY}, 19
    s_add_u32 s49, s49, {SOFF}
    s_add_u32 s49, s49, {SB + j_off * 256 * KB}
    s_lshl_b32 s50, {LAY}, 5
    s_add_u32 s50, s50, {16 * (j_off + 1)}
    s_lshl_b32 s42, {RB32}, 7
    s_add_u32 s42, s42, {XFL}
    v_and_b32 v138, 15, v0
    v_lshlrev_b32 v138, 2, v138
    '''


def publish_x(A, sc, window):
    A(f'''
    buffer_store_dwordx4 {v(RES, 4)}, v1, s[8:11], s48 offen {sc.x}
    buffer_store_dwordx4 {v(RES + 4, 4)}, v1, s[8:11], s48 offen offset:1024 {sc.x}
    ''')
    stats_part(A, ACC, 88, 's49', sc.x, tok='xs')
    stamp(A)
    window()
    A.wait('xs')
    flag(A, XFA, 's50', sc.f)
    stamp(A)
    poll(A, 'v138', 's42', 's50')
    stamp(A)


def k2(A, m, sc, S):
    G = S.G
    poll(A, 'v139', 's55', 's56')
    stamp(A)
    for hh in range(8):
        for r in range(2):
            A(f'buffer_load_dwordx4 {a(8 * hh + 4 * r, 4)}, {("v8", "v9")[r]}, s[8:11], s34 offen '
              f'offset:{(hh & 1) * 2048} sc1')
        if hh & 1:
            A('s_add_u32 s34, s34, 4096')
    S.wdq = list(range(32, 32 + CFG['w4_wd'])) + list(range(32)) + list(range(32 + CFG['w4_wd'], 56))
    S.wdbase = 0
    w4 = [lambda: G.emit(1)] * (24 - G.i) + [lambda: wdload(A, S)] * CFG['w4_wd']
    if not CFG['w4_g_in']:
        for x in w4:
            x()
        w4 = []
    A(publish_addr(1))
    reduce_epilogue(A, m)
    for hh in range(8):
        for r, c in ((1, 1), (1, 0), (0, 1), (0, 0)):
            t = v(ACC + 16 * (2 * r + c), 16)
            A(f'{MF} {t}, {a(128 + 8 * hh + 4 * c, 4)}, {a(8 * hh + 4 * r, 4)}, {"0" if hh == 0 else t}')
            if w4 and (len(w4) > 16 or c == 0):
                w4.pop(0)()
        if hh == 0:
            stamp(A)
    for x in w4:
        x()
    stamp(A)
    reduce_finish(A, m)

    def w5():
        A('s_barrier')
        G.emit(CFG['w5_g'])
        wdload(A, S, CFG['w5_wd'])
        A(f'''
        s_lshl_b32 s34, {LAY}, 22
        s_lshl_b32 s16, {RB32}, 15
        s_add_u32 s34, s34, s16
        s_add_u32 s34, s34, {X[1]}
        s_lshl_b32 s35, {LAY}, 19
        s_lshl_b32 s16, {RB32}, 12
        s_add_u32 s35, s35, s16
        s_add_u32 s35, s35, {ST[1]}
        s_lshr_b32 s16, {RB32}, 1
        s_mul_i32 s16, s16, 112
        s_lshr_b32 s17, {C}, 2
        s_mul_i32 s17, s17, 28
        s_add_u32 s16, s16, s17
        s_and_b32 s17, {C}, 3
        s_add_u32 s16, s16, s17
        s_lshl_b32 s16, s16, 1
        s_and_b32 s17, {W}, 1
        s_add_u32 s16, s16, s17
        s_lshl_b32 s16, s16, 10
        s_mul_i32 s17, {LAY}, {7168 * KB}
        s_add_u32 s16, s16, s17
        s_add_u32 s52, s16, {HB}
        s_lshl_b32 s53, {LAY}, 1
        s_add_u32 s53, s53, 1
        s_add_u32 s54, s53, 1
        s_mul_i32 s37, {RB64}, {224 * KB}
        s_mul_i32 s16, {W}, {56 * KB}
        s_add_u32 s37, s37, s16
        s_add_u32 s37, s37, s17
        s_add_u32 s37, s37, {HB}
        ''')
    publish_x(A, sc, w5)


def hload(A, S, st):
    while S.wdq and min(S.wdq) < 2 * st + 2:
        S.wdq.sort()
        wdload(A, S)
    for r in range(2):
        A(f'buffer_load_dwordx4 {a(8 * (st % 16) + 4 * r, 4)}, {("v8", "v9")[r]}, s[8:11], s37 offen '
          f'offset:{(st & 1) * 2048} sc1')
    if st & 1:
        A('s_add_u32 s37, s37, 4096')


def k3(A, m, sc, S):
    WB, STR, MEAN, RSTD, T, XF, E = 88, 120, 136, 137, 156, 140, 144
    G = S.G
    D = CFG['xdepth']

    def xload(kg):
        A(f'buffer_load_dwordx4 {a(4 * kg, 4)}, v1, s[8:11], s34 offen offset:{(kg & 3) * 1024} sc1')
        if kg & 3 == 3:
            A('s_add_u32 s34, s34, 4096')
    for kg in range(D):
        xload(kg)
        if kg == 3:
            stats_load(A, STR, 's35')
    items = []
    for kg in range(32):
        for t in range(3):
            items.append((t, kg, (3 * kg + t) * KB, 3 * kg + t))
    for t in range(3):
        items.append((t, 32, L_XG + t * KB, None))
    for t in range(3, 7):
        for kg in range(32):
            p = 32 * t + kg
            items.append((t, kg, (p * KB) % RING, p))
        items.append((t, 32, L_XG + t * KB, None))
    N = len(items)
    accreg = lambda t: ACC + 16 * (t if t < 4 else t - 4)
    NB, LAG = 8, 4
    buf = lambda i: v(WB + 4 * (i % NB), 4)

    def epi(t):
        g = accreg(t)
        pk = 120 + 4 * (t & 1)
        mul = lambda i: f'v_mul_f32 {v(E + i)}, {v(MEAN)}, {v(g + i)}'
        ex = lambda i: f'v_exp_f32 {v(E + i)}, {v(E + i)}'
        fm = lambda i: f'v_fma_f32 {v(E + i)}, {v(E + i)}, {v(RSTD)}, {v(RSTD)}'
        rc = lambda i: f'v_rcp_f32 {v(E + i)}, {v(E + i)}'
        mu = lambda i: f'v_mul_f32 {v(E + i)}, {v(E + i)}, {v(g + 8 + i)}'
        cv = lambda i: f'v_cvt_pk_bf16_f32 {v(pk + i // 2)}, {v(E + i)}, {v(E + i + 1)}'
        L = []
        for s_ in range(8 + 4):
            for fn, d in ((mul, 0), (ex, 1), (fm, 2), (rc, 3), (mu, 4)):
                if 0 <= s_ - d < 8:
                    L.append(fn(s_ - d))
            if s_ - 4 >= 1 and (s_ - 4) % 2 == 1:
                L.append(cv(s_ - 5))
        L.append(lambda: (A(f'buffer_store_dwordx4 {v(pk, 4)}, v1, s[8:11], s52 offen {sc.h}', tok=f'h{t}'),
                          A(f's_add_u32 s52, s52, {8 * KB}')))
        return L
    stat = stats_combine(STR, MEAN, RSTD, T, XF)
    stat += [f'v_mul_f32 {v(MEAN)}, {f2u(-LOG2E)}, {v(RSTD)}', f'v_rcp_f32 {v(RSTD)}, {v(RSTD)}']
    mem = {}

    def spread(lo, hi, fns):
        for k, fn in enumerate(fns):
            mem.setdefault(lo + (hi - lo) * k // max(len(fns), 1), []).append(fn)
    dma1 = lambda: G.emit(1, fresh=False)
    wd1 = lambda: wdload(A, S)
    have = G.i
    kw = CFG['k3_wd']
    spread(4, 24, [dma1] * (36 - have))
    spread(36, 90, [dma1] * 4 + [wd1] * kw[0])
    spread(100, 130, [dma1] * 8 + [wd1] * kw[1])
    spread(133, 163, [dma1] * 8 + [wd1] * kw[2])
    spread(166, 196, [wd1] * kw[3])
    he = CFG['hearly']
    spread(199, 215, [wd1] * kw[4])
    mem.setdefault(205, []).append(lambda: (A.wait('h3'), flag(A, 's47', 's53', sc.f)))
    if he:
        mem.setdefault(216, []).append(lambda: presample(A, 'v158', 'v139', 's51'))
    groups = []
    for i in range(N + LAG):
        g = []
        pre = []
        if i < N:
            t, kg, ad, p = items[i]
            if p == 0:
                pre.append(lambda: (A.wait(*[f'g{q}' for q in range(6)], 'xfw'), A('s_barrier')))
            elif p == 30:
                pre.append('s_barrier')
            elif p is not None and p >= 96 and p % 32 == 0:
                if CFG['k3stamps']:
                    pre.append(lambda: stamp(A))
                pre.append(lambda j=p // 16: (A.wait(f'g{j}', f'g{j + 1}'), A('s_barrier')))
                if CFG['k3stamps']:
                    pre.append(lambda: stamp(A))
            pre.append(lds_rd(buf(i), ad))
        if i >= LAG:
            q = i - LAG
            t, kg, ad, p = items[q]
            if q % 2 == 0 and i + 1 < N and q > 0:
                g.append(f's_waitcnt lgkmcnt({LAG - 2})')
            xf = a(4 * kg, 4) if kg < 32 else v(XF, 4)
            acc = v(accreg(t), 16)
            g.append(f'{MF} {acc}, {buf(q)}, {xf}, {"0" if kg == 0 else acc}')
            g += pre
            if q < 96 and t == 2 and kg + D < 32:
                g.append(lambda kg=kg: xload(kg + D))
            g += mem.get(q, [])
        else:
            g = pre
        groups.append(g)
    b = lambda t: 99 + 33 * t + LAG + 1
    emit_with_fill(A, groups[:3 + LAG], [], 0)
    stamp(A)
    emit_with_fill(A, groups[3 + LAG:30], [], 0)
    even_fill(A, groups[30:92], stat)
    emit_with_fill(A, groups[92:b(0)], [], 0)
    stamp(A)
    e = [epi(t) for t in range(7)]
    hf = len(e[0]) // 2
    even_fill(A, groups[b(0):b(1) - 2], e[0] + e[1][:hf])
    emit_with_fill(A, groups[b(1) - 2:b(1)], [], 0)
    even_fill(A, groups[b(1):b(2) - 2], e[1][hf:] + e[2])
    emit_with_fill(A, groups[b(2) - 2:b(2)], [], 0)
    even_fill(A, groups[b(2):b(3)], e[3] + e[4][:hf])
    even_fill(A, groups[b(3):], e[4][hf:] + e[5])
    assert G.i == 56, G.i
    stamp(A)
    if he:
        poll(A, 'v139', 's51', 's53', pre='v158')
        for st in range(he):
            hload(A, S, st)
    for x in e[6]:
        run(A, x)
    stamp(A)


def k4(A, m, sc, S):
    D = CFG['hdepth']
    he = CFG['hearly']
    if not he:
        poll(A, 'v139', 's51', 's53')
    for st in range(he, D):
        hload(A, S, st)
    A('s_barrier')
    A.wait('h6')
    flag(A, 's47', 's54', sc.f)
    stamp(A)
    Q = wqkv_start(A)
    nq = CFG['k4_q']

    def l0_q(n):
        lab = A.uid('l0')
        A(f's_cmp_lg_u32 {LAY}, 0\ns_cbranch_scc1 {lab}')
        Q.emit(n)
        A.label(lab)
    for st in range(28):
        if st == 26:
            A(publish_addr(2))
            reduce_epilogue(A, m)
        for r, c in ((1, 1), (1, 0), (0, 1), (0, 0)):
            t = v(ACC + 16 * (2 * r + c), 16)
            A(f'{MF} {t}, {wd_reg(2 * st + c)}, {a(8 * (st % 16) + 4 * r, 4)}, {"0" if st == 0 else t}')
        if st == 0:
            stamp(A)
        if st + D == 13:
            presample(A, 'v158', 'v139', 's51')
        if st + D == 16:
            stamp(A)
            poll(A, 'v139', 's51', 's54', pre='v158')
            stamp(A)
        if st + D < 28:
            hload(A, S, st + D)
            if nq and st % 3 == 2 and Q.i < nq:
                l0_q(min(2, nq - Q.i))
        if st + D == 28:
            l0_q(CFG['w7_q'] + nq - Q.i)
    stamp(A)
    reduce_finish(A, m)
    A(f's_cmp_lg_u32 {LAY}, 0\ns_cbranch_scc1 {m}_final')
    publish_x(A, sc, lambda: Q.upto(6))
    stamp(A, True)
    n = NST[0]
    stamp_flush(A, 1)
    A(f's_mov_b32 {LAY}, 1\ns_branch {m}')
    A.label(m + '_final')
    for f in range(2):
        r = RES + 4 * f
        A(f'v_permlane32_swap_b32 {v(r)}, {v(r + 2)}\nv_permlane32_swap_b32 {v(r + 1)}, {v(r + 3)}')
    A(f'''
    s_mov_b64 s[12:13], s[60:61]
    s_mov_b32 s14, {2048 * KB}
    s_mov_b32 s15, 0x20000
    v_lshlrev_b32 v7, 10, v2
    v_lshl_add_u32 v7, v3, 4, v7
    buffer_store_dwordx4 {v(RES, 4)}, v7, s[12:15], s57 offen {CFG['fin_sc']}
    buffer_store_dwordx4 {v(RES + 4, 4)}, v7, s[12:15], s57 offen offset:32 {CFG['fin_sc']}
    ''')
    if CFG['diag']:
        NST[0] = n - 2
        A('s_waitcnt vmcnt(0)')
        stamp(A)
        stamp(A, True)
        stamp_flush(A, 2)
    A('s_endpgm')


def body(A, m, sc):
    S = St()
    A.label(m)
    stamp(A)
    k1(A, m, sc, S)
    k2(A, m, sc, S)
    k3(A, m, sc, S)
    k4(A, m, sc, S)


def build(cfg=None):
    if cfg:
        CFG.update(cfg)
    A = Asm()
    A('.p2align 8')
    A.label(KN)
    p0(A)
    from types import SimpleNamespace as NS
    body(A, 'L_fast', NS(**CFG.get('sc', dict(o='sc1', x='sc1', h='sc1', f=''))))
    body(A, 'L_safe', NS(o='sc1', x='sc1', h='sc1', f='sc1'))
    A.label('L_end')
    A('s_endpgm')
    mx = A.maxreg()
    assert mx['v'] < 256 and mx['a'] < 256 and mx['s'] < 100, mx
    txt = A.finalize([KN])
    head = f'; @launch grid=(256,1,1) block=(256,1,1) lds={LDS}\n'
    head += f'.amdgcn_target "amdgcn-amd-amdhsa--gfx950"\n.text\n.globl {KN}\n.type {KN},@function\n'
    tail = f'''
.section .rodata,"a"
.p2align 6
.amdhsa_kernel {KN}
  .amdhsa_next_free_vgpr 512
  .amdhsa_next_free_sgpr 100
  .amdhsa_accum_offset 256
  .amdhsa_group_segment_fixed_size 0
  .amdhsa_kernarg_size 80
  .amdhsa_user_sgpr_count 2
  .amdhsa_user_sgpr_kernarg_segment_ptr 1
  .amdhsa_system_sgpr_workgroup_id_x 1
  .amdhsa_float_denorm_mode_32 3
.end_amdhsa_kernel
'''
    return head + txt + tail


if __name__ == '__main__':
    import json
    out = sys.argv[1] if len(sys.argv) > 1 else f'cdna_kernels/{NAME}.s'
    cfg = json.loads(sys.argv[2]) if len(sys.argv) > 2 else None
    open(out, 'w').write(build(cfg))
    print('wrote', out)
```

```python
import re

REG_RE = re.compile(r'^(-|abs\()?([vas])(\d+)\)?$')
RNG_RE = re.compile(r'^(-|abs\()?([vas])\[(\d+):(\d+)\]\)?$')
TRANS = ('v_exp_f32', 'v_log_f32', 'v_rcp_f32', 'v_rsq_f32', 'v_sqrt_f32', 'v_sin_f32', 'v_cos_f32',
         'v_rcp_iflag_f32')


def regs_of(op):
    op = op.strip()
    m = REG_RE.match(op)
    if m:
        return [m.group(2) + m.group(3)]
    m = RNG_RE.match(op)
    if m:
        return [m.group(2) + str(i) for i in range(int(m.group(3)), int(m.group(4)) + 1)]
    if op == 'vcc':
        return ['vcc']
    if op in ('vcc_lo', 'vcc_hi'):
        return ['vcc']
    if op == 'exec':
        return ['exec']
    if op == 'm0':
        return ['m0']
    return []


class Ins:
    __slots__ = ('text', 'op', 'dst', 'src', 'kind', 'label', 'target', 'tok_def', 'tok_use', 'mfma',
                 'cnt', 'ops', 'flags', 'pre', 'nws')

    def __init__(self, text, tok_def=None, tok_use=None):
        self.text = text
        self.label = None
        self.target = None
        self.tok_def = tok_def
        self.tok_use = tok_use or []
        self.dst = []
        self.src = []
        self.kind = None
        self.cnt = None
        self.mfma = None
        self.pre = []
        self.flags = ''
        self.nws = 1
        t = text.split(';')[0].strip()
        if t.endswith(':'):
            self.kind = 'label'
            self.label = t[:-1]
            self.op = None
            self.nws = 0
            return
        if t == '' or t.startswith('.'):
            self.kind = 'pseudo'
            self.op = None
            self.nws = 0
            return
        parts = t.split(None, 1)
        self.op = op = re.sub(r'_(e32|e64|dpp|sdwa)$', '', parts[0])
        rest = parts[1] if len(parts) > 1 else ''
        ops, depth, cur = [], 0, ''
        for ch in rest:
            if ch in '[(':
                depth += 1
            if ch in '])':
                depth -= 1
            if ch == ',' and depth == 0:
                ops.append(cur.strip())
                cur = ''
            else:
                cur += ch
        if cur.strip():
            ops.append(cur.strip())
        flags = ''
        if ops:
            sp = ops[-1].split(None, 1)
            if len(sp) > 1 and not op.startswith('s_waitcnt'):
                ops[-1] = sp[0]
                flags = sp[1]
        self.ops = ops
        self.flags = flags
        R = [regs_of(o) for o in ops]
        flat = lambda l: [r for x in l for r in x]
        if op.startswith('v_mfma'):
            self.kind = 'mfma'
            self.dst = R[0]
            self.src = flat(R[1:])
            passes = 8 if '32x32' in op else 4
            self.mfma = dict(passes=passes, d=R[0], a=R[1], b=R[2], c=R[3])
        elif op.startswith('v_'):
            self.kind = 'valu'
            if op.startswith('v_cmp'):
                self.dst = R[0]
                self.src = flat(R[1:])
            elif op in ('v_add_co_u32', 'v_sub_co_u32', 'v_addc_co_u32', 'v_subb_co_u32', 'v_mad_u64_u32'):
                self.dst = R[0] + R[1]
                self.src = flat(R[2:])
            elif op.startswith('v_permlane') and 'swap' in op:
                self.dst = R[0] + R[1]
                self.src = R[0] + R[1]
            elif op in ('v_fmac_f32', 'v_dot2c_f32_bf16', 'v_pk_fmac_f16', 'v_writelane_b32'):
                self.dst = R[0]
                self.src = flat(R)
            elif op == 'v_nop':
                pass
            else:
                self.dst = R[0]
                self.src = flat(R[1:])
            if 'dpp' in parts[0] or 'row_' in flags or 'quad_perm' in flags:
                self.flags += ' DPP'
                self.src = self.src + self.dst
        elif op.startswith('ds_'):
            self.kind = 'ds'
            self.cnt = 'lgkm'
            if op.startswith('ds_read') or op.startswith('ds_bpermute') or op.startswith('ds_swizzle') \
                    or op.startswith('ds_permute') or '_rtn' in op:
                self.dst = R[0]
                self.src = flat(R[1:])
            else:
                self.src = flat(R)
        elif op.startswith('buffer_') or op.startswith('global_'):
            self.kind = 'vmem'
            self.cnt = 'vm'
            fl = flags.split()
            if op in ('buffer_wbl2', 'buffer_inv'):
                pass
            elif 'lds' in fl or '_lds_' in op:
                self.src = flat(R) + ['m0']
                self.flags += ' DMA'
            elif '_load' in op:
                self.dst = R[0]
                self.src = flat(R[1:])
            elif '_atomic' in op and 'sc0' in fl:
                if op.startswith('buffer_'):
                    self.dst = R[0]
                    self.src = flat(R)
                else:
                    self.dst = R[0]
                    self.src = flat(R[1:])
            else:
                self.src = flat(R)
        elif op.startswith('s_load') or op.startswith('s_buffer_load') or op in ('s_memtime', 's_memrealtime') \
                or op.startswith('s_atomic'):
            self.kind = 'smem'
            self.cnt = 'smem'
            self.dst = R[0]
            self.src = flat(R[1:]) + (R[0] if op.startswith('s_atomic') else [])
        elif op in ('s_branch',) or op.startswith('s_cbranch'):
            self.kind = 'branch'
            self.target = ops[0]
            if 'vcc' in op:
                self.src = ['vcc']
            if 'exec' in op:
                self.src = ['exec']
        elif op == 's_endpgm':
            self.kind = 'end'
        elif op == 's_waitcnt':
            self.kind = 'wait'
        elif op == 's_nop':
            self.kind = 'salu'
            self.nws = int(ops[0], 0) + 1
        elif op.startswith('s_cmp') or op in ('s_barrier', 's_setprio', 's_sleep', 's_bitcmp0_b32',
                                              's_bitcmp1_b32', 's_sethalt'):
            self.kind = 'salu'
            self.src = flat(R)
        elif op.startswith('s_'):
            self.kind = 'salu'
            self.dst = R[0]
            self.src = flat(R[1:])
            if 'saveexec' in op:
                self.dst = self.dst + ['exec']
                self.src = self.src + ['exec']
            if op in ('s_addk_i32', 's_mulk_i32'):
                self.src = self.src + R[0]
        else:
            raise ValueError('unknown instruction: ' + text)

    def store_data(self):
        if self.kind != 'vmem' or not re.search(r'store_dwordx[34]', self.op):
            return []
        o = self.ops[0] if self.op.startswith('buffer_') else self.ops[1]
        return regs_of(o)


def parse_wait(text):
    vm = re.search(r'vmcnt\((\d+)\)', text)
    lg = re.search(r'lgkmcnt\((\d+)\)', text)
    return (int(vm.group(1)) if vm else None, int(lg.group(1)) if lg else None)


class Asm:
    def __init__(self):
        self.ins = []
        self._uid = 0

    def __call__(self, text, tok=None):
        lines = [l.strip() for l in text.strip().split('\n')]
        lines = [l for l in lines if l and not l.startswith(';')]
        for n, l in enumerate(lines):
            self.ins.append(Ins(l, tok_def=tok if n == len(lines) - 1 else None))

    def wait(self, *toks):
        i = Ins('')
        i.tok_use = list(toks)
        self.ins.append(i)

    def wait_regs(self, regs):
        i = Ins('')
        i.src = list(regs)
        self.ins.append(i)

    def label(self, name):
        self.ins.append(Ins(name + ':'))

    def uid(self, p='L'):
        self._uid += 1
        return '%s_%d' % (p, self._uid)

    def comment(self, s):
        self.ins.append(Ins('; ' + s))

    def _cfg(self):
        ins = self.ins
        lab = {x.label: i for i, x in enumerate(ins) if x.kind == 'label'}
        succ = []
        for i, x in enumerate(ins):
            s = []
            if x.kind == 'end':
                pass
            elif x.kind == 'branch':
                s.append(lab[x.target])
                if x.op != 's_branch' and i + 1 < len(ins):
                    s.append(i + 1)
            elif i + 1 < len(ins):
                s.append(i + 1)
            succ.append(s)
        pred = [[] for _ in ins]
        for i, s in enumerate(succ):
            for j in s:
                pred[j].append(i)
        return succ, pred

    def _waits(self, entries):
        ins = self.ins
        succ, pred = self._cfg()
        n = len(ins)
        need = [None] * n
        state_in = [None] * n
        lab = {x.label: i for i, x in enumerate(ins) if x.kind == 'label'}
        work = []
        for e in entries:
            state_in[lab[e]] = {}
            work.append(lab[e])

        def apply_wait(st, vm, lg):
            out = {}
            for k, (c, y) in st.items():
                if c == 'vm' and vm is not None and y >= vm:
                    continue
                if c == 'lgkm' and lg is not None and (lg == 0 or (y >= lg and '#smem' not in st)):
                    continue
                if c == 'smem' and lg == 0:
                    continue
                out[k] = (c, y)
            return out

        def merge(a, b):
            out = dict(a)
            ch = False
            for k, (c, y) in b.items():
                if k not in out:
                    out[k] = (c, y)
                    ch = True
                else:
                    c0, y0 = out[k]
                    if c0 != c:
                        raise ValueError('counter class clash on %s' % k)
                    if y < y0:
                        out[k] = (c, y)
                        ch = True
            return out, ch

        import heapq
        heapq.heapify(work)
        inwork = set(work)
        while work:
            i = heapq.heappop(work)
            inwork.discard(i)
            x = ins[i]
            st = state_in[i]
            vm = lg = None
            keys = list(x.src) + list(x.dst) + ['tok:' + t for t in x.tok_use]
            for k in keys:
                if k in st:
                    c, y = st[k]
                    if c == 'vm':
                        vm = min(y, 63) if vm is None else min(vm, y)
                    elif c == 'lgkm':
                        yy = 0 if '#smem' in st else min(y, 15)
                        lg = yy if lg is None else min(lg, yy)
                    else:
                        lg = 0
            if need[i] is not None:
                pv, pl = need[i]
                vm = pv if vm is None else (vm if pv is None else min(vm, pv))
                lg = pl if lg is None else (lg if pl is None else min(lg, pl))
            if vm is not None or lg is not None:
                need[i] = (vm, lg)
                st = apply_wait(st, vm, lg)
            if x.kind == 'wait':
                st = apply_wait(st, *parse_wait(x.text))
            if x.cnt:
                cls = x.cnt
                grp = 'vm' if cls == 'vm' else 'lgkm'
                new = {}
                for k, (c, y) in st.items():
                    if (c == 'vm') == (grp == 'vm'):
                        new[k] = (c, min(y + 1, 64))
                    else:
                        new[k] = (c, y)
                st = new
                for r in x.dst:
                    st[r] = (cls, 0)
                if x.tok_def:
                    st['tok:' + x.tok_def] = (cls, 0)
                if cls == 'smem':
                    st['#smem'] = ('smem', 0)
            for j in succ[i]:
                if state_in[j] is None:
                    state_in[j] = st
                    ch = True
                else:
                    state_in[j], ch = merge(state_in[j], st)
                if ch and j not in inwork:
                    heapq.heappush(work, j)
                    inwork.add(j)
        out = []
        for i, x in enumerate(ins):
            if need[i] is not None:
                vm, lg = need[i]
                t = 's_waitcnt'
                if vm is not None:
                    t += ' vmcnt(%d)' % vm
                if lg is not None:
                    t += ' lgkmcnt(%d)' % lg
                out.append(Ins(t))
            out.append(x)
        self.ins = out

    @staticmethod
    def _hazard(p, c):
        w = 0
        pd = set(p.dst)
        if p.kind == 'valu':
            vd = {r for r in pd if r[0] in 'va' and r != 'vcc'}
            sd = {r for r in pd if r[0] == 's' or r == 'vcc'}
            if c.kind == 'mfma' and vd & set(c.src):
                w = max(w, 2)
            if c.kind == 'valu':
                if c.op.startswith('v_permlane') and vd & set(c.src):
                    w = max(w, 2)
                if 'DPP' in c.flags and vd & set(c.src):
                    w = max(w, 2)
                if c.op in ('v_readlane_b32', 'v_readfirstlane_b32') and vd & set(c.src):
                    w = max(w, 1)
                if p.op in TRANS and vd & set(c.src):
                    w = max(w, 1)
                if sd & set(c.src):
                    w = max(w, 4 if c.op in ('v_readlane_b32', 'v_writelane_b32') else 2)
                if not p.op.startswith('v_pk_') and ('op_sel' in p.flags or 'dst_sel' in p.flags) and vd & (set(c.src) | set(c.dst)):
                    w = max(w, 1)
            if c.kind == 'mfma' and p.op in TRANS and vd & set(c.src):
                w = max(w, 2)
            if c.kind == 'vmem' and sd & set(c.src):
                w = max(w, 5)
            if c.kind in ('salu', 'smem', 'branch') and sd & set(c.src):
                w = max(w, 4)
            if p.op.startswith('v_dot2') and c.kind in ('valu', 'mfma', 'vmem', 'ds'):
                if vd & (set(c.src) | set(c.dst)):
                    same_c = c.op == p.op and not (vd & set(regs_of(c.ops[1]) + regs_of(c.ops[2])))
                    if not same_c:
                        w = max(w, 3)
        if p.kind == 'mfma':
            ps = p.mfma['passes']
            d = set(p.mfma['d'])
            if c.kind == 'mfma':
                if d & (set(c.mfma['a']) | set(c.mfma['b'])):
                    w = max(w, 12 if ps == 8 else 8)
                if d & set(c.mfma['c']):
                    if not (c.mfma['c'] == p.mfma['d'] and c.mfma['passes'] == ps):
                        w = max(w, 10 if ps == 8 else 6)
                elif d & set(c.mfma['d']):
                    w = max(w, 12 if ps == 8 else 8)
            elif c.kind in ('valu', 'vmem', 'ds'):
                if d & (set(c.src) | set(c.dst)):
                    w = max(w, 12 if ps == 8 else 8)
                if c.kind == 'valu' and set(p.mfma['c']) & set(c.dst):
                    w = max(w, 7 if ps == 8 else 3)
        if p.kind == 'salu' and 'm0' in pd and c.kind == 'vmem' and 'DMA' in c.flags:
            w = max(w, 1)
        if p.kind == 'salu' and 'exec' in pd and c.kind == 'valu' and 'DPP' in c.flags:
            w = max(w, 1)
        sdat = p.store_data()
        if sdat and set(sdat) & set(c.dst):
            w = max(w, 2)
        if p.kind == 'ds' and p.op in ('ds_write_b128', 'ds_write_b96') and c.kind == 'valu':
            pass
        return w

    def _nops(self):
        MAXW = 12
        changed = True
        while changed:
            changed = False
            ins = self.ins
            succ, pred = self._cfg()
            out = []
            add = [0] * len(ins)
            for i, c in enumerate(ins):
                if c.op is None or c.kind in ('wait', 'end'):
                    continue
                need = 0
                stack = [(j, 0) for j in pred[i]]
                seen = {}
                while stack:
                    j, dist = stack.pop()
                    if j in seen and seen[j] <= dist:
                        continue
                    seen[j] = dist
                    p = ins[j]
                    if p.op is not None:
                        h = self._hazard(p, c)
                        if h > dist:
                            need = max(need, h - dist)
                    nd = dist + p.nws + add[j]
                    if nd < MAXW:
                        for k in pred[j]:
                            stack.append((k, nd))
                add[i] = need
            for i, c in enumerate(ins):
                if add[i]:
                    out.append(Ins('s_nop %d' % (add[i] - 1)))
                    changed = True
                out.append(c)
            self.ins = out

    def finalize(self, entries):
        self._waits(entries)
        self._nops()
        return '\n'.join(('' if x.kind == 'label' else '  ') + x.text for x in self.ins if x.text != '')

    def maxreg(self, lo=0, hi=None):
        mx = {'v': -1, 'a': -1, 's': -1}
        for x in self.ins[lo:hi]:
            for r in list(x.dst) + list(x.src):
                if r[0] in mx and r[1:].isdigit():
                    mx[r[0]] = max(mx[r[0]], int(r[1:]))
        return mx


def v(i, n=1):
    return 'v%d' % i if n == 1 else 'v[%d:%d]' % (i, i + n - 1)


def a(i, n=1):
    return 'a%d' % i if n == 1 else 'a[%d:%d]' % (i, i + n - 1)


def s(i, n=1):
    return 's%d' % i if n == 1 else 's[%d:%d]' % (i, i + n - 1)


def f2u(x):
    import struct
    return '0x%08x' % struct.unpack('<I', struct.pack('<f', x))[0]
```

```python
import sys, math
from asmlib import Asm, v, a, s, f2u

KB = 1024
NAME = 'interleave_layers__linear_attn_block__glu_gated_glu__prompt'
KN = NAME + '_kernel'
off = 0


def alloc(n):
    global off
    o = off
    off += (n + 4095) // 4096 * 4096
    return o


WQKV = alloc(16 * 96 * KB)
WO = alloc(512 * KB)
WGU = alloc(16 * 224 * KB)
WD = alloc(1792 * KB)
XB = alloc(4 * 2048 * KB)
X = [XB + j * 2048 * KB for j in range(4)]
SB = alloc(4 * 256 * KB)
ST = [SB + j * 256 * KB for j in range(4)]
OB = alloc(2 * 2048 * KB)
HB = alloc(2 * 7168 * KB)
KVS = 256 * 2176
KVP = alloc(2 * KVS)
CSQ = alloc(256 * 384)
CSG = alloc(256 * 1024)
FL = alloc(20 * KB)
XFL, OFL, HFL, CFL = FL, FL + 8 * KB, FL + 12 * KB, FL + 16 * KB
DIAG = 128 << 20
WS_BYTES = 268435456
LOG2E = math.log2(math.e)
MF = 'v_mfma_f32_32x32x16_bf16'

RING = 144 * KB
L_RED = 96 * KB
L_XQ = 144 * KB
L_XG = 147 * KB
L_RS = 158 * KB
L_KV = 155 * KB
LDS = 160 * KB

W, RB, C, RB32, RB64, CB, LAY, XCC = 's20', 's21', 's22', 's23', 's24', 's25', 's26', 's27'
TOFF, SOFF, XFA = 's28', 's29', 's30'
ACC, RES = 16, 80
CFG = dict(diag=0, force_safe=0, xdepth=10, hdepth=10, nt='nt', fin_sc='', k3stamps=0,
           w9_wd=4, w1_g=4, w2_g=6, w3_g=8, w4_wd=8, w5_g=0, w5_wd=4, k3_wd=(4, 4, 4, 12, 0),
           l0_w1_g=0, win_first=1, w4_in=1,
           k4_q=12, w7_q=8, hearly=6, fa_q=178, hpre_q=196, tailmaj=4, fc_at=4, cchk=7, k4_wd=2, e6_groups=8,
           dbl=0, pb_issue=4, pb_at=(5, 6, 7), arr1=2, cs_at=5, pay_at=1, arr2=0)
NST = [0]


def stamp(A, real=False):
    if not CFG['diag'] or (CFG['diag'] == 2 and not real):
        NST[0] += 1
        return
    i = NST[0]
    NST[0] += 1
    assert i < 32
    if real:
        A(f's_memrealtime s[92:93]\ns_waitcnt lgkmcnt(0)\nv_writelane_b32 v15, s92, {i}')
    else:
        A(f's_memtime s[92:93]\ns_memrealtime s[94:95]\ns_waitcnt lgkmcnt(0)\nv_writelane_b32 v15, s92, {i}\n'
          f'v_writelane_b32 v15, s94, {32 + i}')


def stamp_flush(A, seg):
    if not CFG['diag']:
        return
    A(f'''
    s_lshl_b32 s16, s2, 2
    s_add_u32 s16, s16, {W}
    s_mul_i32 s16, s16, 3
    s_add_u32 s16, s16, {seg}
    s_lshl_b32 s16, s16, 8
    s_add_u32 s16, s16, {DIAG}
    v_lshlrev_b32 v7, 2, v0
    buffer_store_dword v15, v7, s[8:11], s16 offen
    v_mov_b32 v15, 0
    ''')
    NST[0] = 0


def swap_add(A, r, t):
    A(f'''
    v_mov_b32 {v(t)}, {v(r)}
    v_permlane32_swap_b32 {v(t)}, {v(r)}
    v_add_f32 {v(r)}, {v(t)}, {v(r)}
    ''')


def stats_part(A, f, t, soff, sc, tok=None):
    A(f'v_pk_add_f32 {v(t, 2)}, {v(f, 2)}, {v(f + 2, 2)}')
    A(f'v_pk_add_f32 {v(t + 2, 2)}, {v(f + 4, 2)}, {v(f + 6, 2)}')
    for i in range(8, 16, 4):
        A(f'v_pk_add_f32 {v(t, 2)}, {v(t, 2)}, {v(f + i, 2)}')
        A(f'v_pk_add_f32 {v(t + 2, 2)}, {v(t + 2, 2)}, {v(f + i + 2, 2)}')
    A(f'v_pk_add_f32 {v(t, 2)}, {v(t, 2)}, {v(t + 2, 2)}')
    A(f'v_add_f32 {v(t)}, {v(t)}, {v(t + 1)}')
    swap_add(A, t, t + 2)
    A(f'v_mul_f32 {v(t)}, {f2u(1 / 32)}, {v(t)}')
    for i in range(0, 16, 2):
        A(f'v_pk_add_f32 {v(f + i, 2)}, {v(f + i, 2)}, {v(t, 2)} op_sel_hi:[1,0] neg_lo:[0,1] neg_hi:[0,1]')
    A(f'v_pk_mul_f32 {v(t + 2, 2)}, {v(f, 2)}, {v(f, 2)}')
    A(f'v_pk_mul_f32 {v(f, 2)}, {v(f + 2, 2)}, {v(f + 2, 2)}')
    for i in range(4, 16, 4):
        A(f'v_pk_fma_f32 {v(t + 2, 2)}, {v(f + i, 2)}, {v(f + i, 2)}, {v(t + 2, 2)}')
        A(f'v_pk_fma_f32 {v(f, 2)}, {v(f + i + 2, 2)}, {v(f + i + 2, 2)}, {v(f, 2)}')
    A(f'v_pk_add_f32 {v(t + 2, 2)}, {v(t + 2, 2)}, {v(f, 2)}')
    A(f'v_add_f32 {v(t + 1)}, {v(t + 2)}, {v(t + 3)}')
    swap_add(A, t + 1, t + 2)
    A(f'buffer_store_dwordx2 {v(t, 2)}, v12, s[8:11], {soff} offen {sc}', tok=tok)


def stats_load(A, dst, soff):
    for q in range(8):
        A(f'buffer_load_dwordx2 {v(dst + 2 * q, 2)}, v4, s[8:11], {soff} offen offset:{q * 256} sc1')


def stats_combine(r, mean, rstd, t, xf):
    L = []
    L.append(f'v_add_f32 {v(mean)}, {v(r)}, {v(r + 2)}')
    L.append(f'v_add_f32 {v(rstd)}, {v(r + 1)}, {v(r + 3)}')
    for q in range(2, 8):
        L.append(f'v_add_f32 {v(mean)}, {v(mean)}, {v(r + 2 * q)}')
        L.append(f'v_add_f32 {v(rstd)}, {v(rstd)}, {v(r + 2 * q + 1)}')
    L += [f'v_mov_b32 {v(t)}, {v(mean)}',
          f'v_permlane32_swap_b32 {v(t)}, {v(mean)}',
          f'v_add_f32 {v(mean)}, {v(t)}, {v(mean)}',
          f'v_mul_f32 {v(mean)}, {f2u(1 / 16)}, {v(mean)}']
    for q in range(8):
        L.append(f'v_sub_f32 {v(r + 2 * q)}, {v(r + 2 * q)}, {v(mean)}')
    L.append(f'v_mul_f32 {v(t)}, {v(r)}, {v(r)}')
    for q in range(1, 8):
        L.append(f'v_fmac_f32 {v(t)}, {v(r + 2 * q)}, {v(r + 2 * q)}')
    L += [f'v_fmamk_f32 {v(rstd)}, {v(t)}, {f2u(32.0)}, {v(rstd)}',
          f'v_mov_b32 {v(t)}, {v(rstd)}',
          f'v_permlane32_swap_b32 {v(t)}, {v(rstd)}',
          f'v_add_f32 {v(rstd)}, {v(t)}, {v(rstd)}',
          f'v_mov_b32 {v(t)}, {f2u(1e-5)}',
          f'v_fmamk_f32 {v(rstd)}, {v(rstd)}, {f2u(1 / 512)}, {v(t)}',
          ]
    return L + stats_tail(mean, rstd, t, xf)


def stats_tail(mean, rstd, t, xf):
    return [f'v_rsq_f32 {v(rstd)}, {v(rstd)}',
            f'v_sub_f32 {v(t)}, 0, {v(mean)}',
            f'v_cvt_pk_bf16_f32 {v(xf + 1)}, {v(t)}, 0',
            f'v_lshlrev_b32 {v(t + 1)}, 16, {v(xf + 1)}',
            f'v_sub_f32 {v(t + 1)}, {v(t)}, {v(t + 1)}',
            f'v_cvt_pk_bf16_f32 {v(xf)}, {v(t)}, {v(t + 1)}',
            f'v_mov_b32 {v(xf + 3)}, 0',
            f'v_mov_b32 {v(xf + 2)}, 0']


def run(A, x):
    x() if callable(x) else A(x)


def emit_with_fill(A, main, fill, per):
    fill = list(fill)
    k = 0
    for g in main:
        for x in g:
            run(A, x)
        for _ in range(per):
            if k < len(fill):
                run(A, fill[k])
                k += 1
    for x in fill[k:]:
        run(A, x)


def poll(A, vaddr, soff, val, width=1, srd='s[8:11]', pre=None):
    lab = A.uid('poll')
    if pre:
        A(f'v_cmp_gt_u32 vcc, {val}, {pre}\ns_cbranch_vccz {lab}_x')
    A('s_mov_b32 s58, 0')
    A.label(lab)
    A(f's_add_u32 s58, s58, 1\ns_cmp_gt_u32 s58, 0x200000\ns_cbranch_scc1 {lab}_x')
    if width == 1:
        A(f'buffer_load_dword {pre or "v14"}, {vaddr}, {srd}, {soff} offen sc1')
    else:
        A(f'buffer_load_dwordx2 v[140:141], {vaddr}, {srd}, {soff} offen sc1\nv_min_u32 v14, v140, v141')
    A(f'v_cmp_gt_u32 vcc, {val}, {pre or "v14"}\ns_cbranch_vccnz {lab}')
    A.label(lab + '_x')


def presample(A, reg, vaddr, soff, srd='s[8:11]'):
    A(f'buffer_load_dword {reg}, {vaddr}, {srd}, {soff} offen sc1')


def even_fill(A, main, fill):
    fill = list(fill)
    k, n = 0, len(main)
    for i, g in enumerate(main):
        for x in g:
            run(A, x)
        while k < len(fill) * (i + 1) // n:
            run(A, fill[k])
            k += 1


def flag(A, addr, val, sc):
    A(f'''
    v_mov_b32 v14, {val}
    s_mov_b64 exec, 1
    buffer_store_dword v14, v13, s[8:11], {addr} offen {sc}
    s_mov_b64 exec, -1
    ''')


def arrive(A, off):
    lab = A.uid('arr')
    A(f'''
    s_cmp_lg_u32 {W}, 0
    s_cbranch_scc1 {lab}
    v_mov_b32 v14, 1
    s_mov_b64 exec, 1
    buffer_atomic_add v14, v13, s[8:11], s33 offen offset:{off} sc1
    s_mov_b64 exec, -1
    ''')
    A.label(lab)


def lds_rd(dst, ad):
    return f'ds_read_b128 {dst}, {("v1", "v5", "v6")[ad >> 16]} offset:{ad & 65535}'


def dma_chunk(A, soff, slot, tok):
    A(f's_add_u32 m0, s31, {slot * 16 * KB}')
    for q in range(4):
        A(f'buffer_load_dwordx4 v1, s[8:11], {soff} offen offset:{q * 1024} sc1 lds', tok=tok)
    A(f's_add_u32 {soff}, {soff}, {16 * KB}')


class Dma:
    def __init__(self, A, name, soff, nslots=9):
        self.A, self.name, self.soff, self.i, self.ns = A, name, soff, 0, nslots

    def one(self):
        j, q = divmod(self.i, 4)
        A = self.A
        A(f's_add_u32 m0, s31, {(j % self.ns) * 16 * KB}')
        A(f'buffer_load_dwordx4 v1, s[8:11], {self.soff} offen offset:{q * 1024} sc1 lds', tok=f'{self.name}{j}')
        if q == 3:
            A(f's_add_u32 {self.soff}, {self.soff}, {16 * KB}')
        self.i += 1

    def emit(self, n, fresh=True):
        for k in range(n):
            j, q = divmod(self.i, 4)
            if (k == 0 and fresh) or q == 0:
                self.one()
            else:
                self.A(f'buffer_load_dwordx4 v1, s[8:11], {self.soff} offen offset:{q * 1024} sc1 lds',
                       tok=f'{self.name}{j}')
                if q == 3:
                    self.A(f's_add_u32 {self.soff}, {self.soff}, {16 * KB}')
                self.i += 1

    def upto(self, chunk):
        self.emit(4 * chunk - self.i)


def colsum_frag(A, src, soff, stride, ldsaddr, t):
    def load():
        for q in range(8):
            if q * stride < 4096:
                A(f'buffer_load_dword {v(src + q)}, v7, s[8:11], {soff} offen offset:{q * stride} sc1')
            else:
                if (q - 1) * stride < 4096:
                    A(f's_add_u32 s19, {soff}, {q * stride}')
                    q0 = q
                A(f'buffer_load_dword {v(src + q)}, v7, s[8:11], s19 offen offset:{(q - q0) * stride} sc1')

    def fin():
        for q in range(1, 8):
            A(f'v_add_f32 {v(src)}, {v(src)}, {v(src + q)}')
        swap_add(A, src, src + 1)
        A(f'''
        v_cvt_pk_bf16_f32 {v(t)}, {v(src)}, {v(src)}
        v_lshlrev_b32 {v(src + 1)}, 16, {v(t)}
        v_sub_f32 {v(src + 1)}, {v(src)}, {v(src + 1)}
        v_cvt_pk_bf16_f32 {v(t + 1)}, {v(src + 1)}, 0
        v_cmp_eq_u32 vcc, 0, v3
        v_mov_b32 {v(t + 2)}, 0
        v_mov_b32 {v(t + 3)}, 0
        v_cndmask_b32 {v(t)}, 0, {v(t)}, vcc
        v_cndmask_b32 {v(t + 1)}, 0, {v(t + 1)}, vcc
        v_add_u32 {v(src + 2)}, {ldsaddr}, v1
        ''')
        A(f'ds_write_b128 {v(src + 2)}, {v(t, 4)}', tok='xfw')
    return load, fin


KT, VT, QT = 16, 32, 48
WB1, STR1, MEAN1, RSTD1, T1, XF1, RL1 = 88, 112, 128, 129, 130, 132, 144


def k1_rows():
    L = [f's_lshl_b32 s16, {W}, 7', f's_add_u32 s16, s16, {L_RS}', f'v_lshl_add_u32 v7, v2, 2, s16',
         f'ds_write_b32 v7, {v(RSTD1)}', f'v_lshl_add_u32 v7, v3, 4, s16']
    L += [f'ds_read_b128 {v(STR1 + 4 * j, 4)}, v7 offset:{32 * j}' for j in range(4)]
    L += [f's_mov_b32 s38, {f2u(LOG2E)}', f'v_mul_f32 {v(MEAN1)}, s38, {v(RSTD1)}',
          f's_mov_b32 s40, {f2u(1e-6)}', f's_mov_b32 s41, {f2u(1e-6)}']
    return L, [f'v_mul_f32 {v(RL1 + i)}, s38, {v(STR1 + i)}' for i in range(16)]


def k1_addr():
    return f'''
    v_bfe_u32 v7, v0, 4, 1
    v_lshlrev_b32 v136, 8, v7
    v_lshlrev_b32 v137, 4, v7
    v_bfe_u32 v7, v0, 2, 1
    v_lshlrev_b32 v138, 3, v7
    v_bfe_u32 v7, v0, 3, 1
    v_lshl_add_u32 v138, v7, 2, v138
    v_and_b32 v7, 3, v0
    v_add_u32 v138, v138, v7
    s_mul_i32 s16, {W}, 2176
    s_add_u32 s16, s16, {L_RED}
    v_add_u32 v136, v136, v138
    v_lshl_add_u32 v136, v3, 6, v136
    v_lshl_add_u32 v136, v136, 2, s16
    v_add_u32 v137, v137, v138
    v_lshl_add_u32 v137, v137, 2, s16
    s_lshl_b32 s16, {W}, 9
    v_lshl_add_u32 v138, v0, 3, s16
    v_add_u32 v139, {L_RED}, v138
    s_lshl_b32 s16, {W}, 5
    s_add_u32 s16, s16, 2048
    v_and_b32 v7, 7, v0
    v_lshl_add_u32 v142, v7, 2, s16
    v_add_u32 v143, {L_RED}, v142
    s_mul_i32 s39, {LAY}, {KVS}
    s_mul_i32 s16, {C}, {16 * 2176}
    s_add_u32 s39, s39, s16
    s_add_u32 s39, s39, {KVP}
    s_mul_i32 s16, {RB}, 2176
    s_add_u32 s37, s39, s16
    v_and_b32 v7, 16, v0
    v_cmp_eq_u32 s[64:65], 0, v7
    '''.strip().split('\n')


def tr(A, dst, base, o, step=512):
    A(f'ds_read_b64_tr_b16 {v(dst, 2)}, {base} offset:{o}\nds_read_b64_tr_b16 {v(dst + 2, 2)}, {base} offset:{o + step}')


def csum(A, acc, regs):
    A(f'v_mov_b32 {v(acc)}, 0\nv_mov_b32 {v(acc + 1)}, 0')
    for i, r in enumerate(regs):
        A(f'v_dot2_f32_bf16 {v(acc + (i & 1))}, {v(r)}, s59, {v(acc + (i & 1))}')
    A(f'v_add_f32 {v(acc)}, {v(acc)}, {v(acc + 1)}')
    swap_add(A, acc, acc + 1)


SX, SQ, SO, SG, SU, SD = 's[68:71]', 's[72:75]', 's[76:79]', 's[80:83]', 's[84:87]', 's[88:91]'


def p0(A):
    nt = CFG['nt']
    A(f'''
    s_cmp_ge_u32 s2, 256
    s_cbranch_scc1 L_end
    s_load_dwordx4 s[68:71], s[0:1], 0
    s_load_dwordx2 s[8:9], s[0:1], 72
    s_load_dwordx4 s[60:63], s[0:1], 56
    s_load_dwordx2 s[76:77], s[0:1], 16
    s_load_dwordx4 s[80:83], s[0:1], 32
    s_load_dwordx2 s[88:89], s[0:1], 48
    ''')
    if CFG['diag']:
        A('v_mov_b32 v15, 0')
    A(f'''
    v_lshrrev_b32 v1, 6, v0
    v_and_b32 v0, 63, v0
    v_readfirstlane_b32 {W}, v1
    v_lshlrev_b32 v1, 4, v0
    s_getreg_b32 {XCC}, hwreg(HW_REG_XCC_ID, 0, 4)
    s_mov_b32 s10, {WS_BYTES}
    s_mov_b32 s11, 0x20000
    s_and_b32 s16, s2, 7
    s_lshr_b32 s17, s2, 3
    s_lshl_b32 s16, s16, 1
    s_lshr_b32 s18, s17, 4
    s_add_u32 {RB}, s16, s18
    s_and_b32 {C}, s17, 15
    s_lshl_b32 {RB32}, {RB}, 2
    s_add_u32 {RB32}, {RB32}, {W}
    v_and_b32 v2, 31, v0
    v_lshrrev_b32 v3, 5, v0
    v_lshrrev_b32 v17, 2, v0
    v_and_b32 v18, 3, v0
    v_lshlrev_b32 v18, 4, v18
    v_mul_u32_u24 v160, 3072, v17
    v_add_u32 v160, v160, v18
    v_mul_u32_u24 v161, 3584, v17
    v_add_u32 v161, v161, v18
    v_lshl_add_u32 v162, v17, 10, v18
    v_lshrrev_b32 v17, 3, v0
    v_lshlrev_b32 v17, 10, v17
    v_lshrrev_b32 v18, 4, v0
    v_and_b32 v19, 7, v0
    v_xor_b32 v18, v18, v19
    v_lshl_add_u32 v163, v18, 4, v17
    v_xor_b32 v164, 64, v163
    v_add_u32 v165, {14 * KB}, v163
    v_add_u32 v166, {21 * KB}, v164
    v_add_u32 v164, {7 * KB}, v164
    s_lshr_b32 s32, {RB}, 1
    s_mul_i32 s34, {W}, {16 * 3072}
    s_lshl_b32 s16, {C}, 6
    s_add_u32 s34, s34, s16
    s_lshl_b32 s35, {RB32}, 15
    s_mul_i32 s36, {W}, 3072
    s_mul_i32 s42, {W}, {12 * KB}
    s_add_u32 s42, s42, {L_RED}
    s_waitcnt lgkmcnt(0)
    s_mov_b64 s[72:73], s[70:71]
    s_mov_b32 s70, {2048 * KB}
    s_mov_b32 s71, 0x20000
    s_mov_b32 s74, {1536 * KB}
    s_mov_b32 s75, 0x20000
    ''')
    stamp(A, True)
    stamp(A)

    def quad_ops(jj):
        L = [lambda: (A(f's_mul_i32 s18, s32, {64 * 3072}\ns_add_u32 m0, s36, {jj * 12 * KB}\ns_add_u32 s18, s18, s34'),
                      A(f'buffer_load_dwordx4 v160, {SQ}, s18 offen lds'))]
        L += [lambda i=i: A(f'buffer_load_dwordx4 v160, {SQ}, s18 offen offset:{i * 1024} lds', tok=f'w{jj}')
              for i in (1, 2)]
        L += [lambda: (A(f's_lshl_b32 s19, s32, 7\ns_add_u32 m0, s42, {(jj % 3) * 4096}\ns_add_u32 s19, s19, s35'),
                       A(f'buffer_load_dwordx4 v163, {SX}, s19 offen lds\ns_add_u32 s32, s32, 1\ns_and_b32 s32, s32, 7'))]
        L += [lambda i=i: A(f'buffer_load_dwordx4 {v(163 + i)}, {SX}, s19 offen offset:{i * 1024} lds', tok=f'x{jj}')
              for i in (1, 2, 3)]
        return L

    def quad(jj):
        for x in quad_ops(jj):
            x()
    A(f'''
    s_cmp_lg_u32 s2, 0
    s_cbranch_scc1 L_noclr0
    v_mov_b32 v24, 0
    v_mov_b32 v25, 0
    v_mov_b32 v26, 0
    v_mov_b32 v27, 0
    s_mul_i32 s16, {W}, {5 * KB}
    s_add_u32 s16, s16, {FL}
    buffer_store_dwordx4 v[24:27], v1, s[8:11], s16 offen sc1
    buffer_store_dwordx4 v[24:27], v1, s[8:11], s16 offen offset:1024 sc1
    buffer_store_dwordx4 v[24:27], v1, s[8:11], s16 offen offset:2048 sc1
    buffer_store_dwordx4 v[24:27], v1, s[8:11], s16 offen offset:3072 sc1
    s_add_u32 s16, s16, 4096
    ''')
    A('buffer_store_dwordx4 v[24:27], v1, s[8:11], s16 offen sc1', tok='clr')
    A.label('L_noclr0')
    quad(0)
    A(f'''
    s_lshl_b32 {RB64}, {RB}, 1
    s_and_b32 s16, {C}, 1
    s_add_u32 {RB64}, {RB64}, s16
    s_lshr_b32 {CB}, {C}, 1
    s_lshr_b32 s16, {W}, 1
    s_and_b32 s17, {W}, 1
    s_lshl_b32 s18, {RB64}, 1
    s_add_u32 s18, s18, s16
    s_lshl_b32 s19, {CB}, 1
    s_add_u32 s19, s19, s17
    s_lshl_b32 {TOFF}, s18, 4
    s_add_u32 {TOFF}, {TOFF}, s19
    s_lshl_b32 {SOFF}, {TOFF}, 8
    s_lshl_b32 {TOFF}, {TOFF}, 11
    s_lshl_b32 {XFA}, s18, 7
    s_lshl_b32 s56, s19, 2
    s_add_u32 {XFA}, {XFA}, s56
    s_add_u32 {XFA}, {XFA}, {XFL}
    s_lshl_b32 s57, s18, 15
    s_lshl_b32 s56, s19, 6
    s_add_u32 s57, s57, s56
    s_lshl_b32 s31, {W}, 12
    s_lshl_b32 s16, s16, 10
    s_lshl_b32 s17, s17, 10
    v_add_u32 v8, s16, v1
    v_xor_b32 v9, 0x400, v8
    v_add_u32 v10, s17, v1
    v_xor_b32 v11, 0x400, v10
    v_lshlrev_b32 v12, 3, v2
    v_lshl_add_u32 v4, v3, 11, v12
    v_add_u32 v5, 0x10000, v1
    v_add_u32 v6, 0x20000, v1
    v_mov_b32 v13, 0
    s_mov_b32 {LAY}, 0
    v_lshlrev_b32 v175, 10, v2
    v_lshl_add_u32 v175, v3, 4, v175
    s_mov_b32 s78, {512 * KB}
    s_mov_b32 s79, 0x20000
    s_mov_b64 s[84:85], s[82:83]
    s_mov_b32 s82, {1792 * KB}
    s_mov_b32 s83, 0x20000
    s_mov_b32 s86, {1792 * KB}
    s_mov_b32 s87, 0x20000
    s_mov_b32 s90, {1792 * KB}
    s_mov_b32 s91, 0x20000
    s_mov_b64 s[12:13], s[62:63]
    s_mov_b32 s14, 256
    s_mov_b32 s15, 0x20000
    s_lshl_b32 s16, {RB64}, 14
    s_lshl_b32 s17, {CB}, 7
    s_add_u32 s16, s16, s17
    s_and_b32 s18, {W}, 1
    s_lshl_b32 s18, s18, 6
    s_add_u32 s16, s16, s18
    s_lshl_b32 s43, {W}, 11
    s_add_u32 s43, s43, {L_XG}
    ''')
    A(f'buffer_load_dwordx4 {v(RES, 4)}, v175, {SX}, s57 offen\n'
      f'buffer_load_dwordx4 {v(RES + 4, 4)}, v175, {SX}, s57 offen offset:32')
    A(f'buffer_load_dwordx4 v[204:207], v162, {SO}, s16 offen {nt}')
    quad(1)
    A('s_cmp_lg_u32 s2, 0\ns_cbranch_scc1 L_noclr')
    A.wait('clr')
    A(f'''
    s_lshl_b32 s16, {W}, 2
    v_mov_b32 v14, 1
    s_mov_b64 exec, 1
    buffer_store_dword v14, v13, s[12:15], s16 offen sc1
    s_mov_b64 exec, -1
    ''')
    A.label('L_noclr')
    PD = 3
    A(f'''
    v_bfe_u32 v17, v2, 1, 3
    v_xor_b32 v17, v17, v3
    v_lshlrev_b32 v17, 4, v17
    v_lshl_add_u32 v17, v2, 7, v17
    v_add_u32 v167, s42, v17
    v_xor_b32 v168, 32, v167
    v_xor_b32 v169, 64, v167
    v_xor_b32 v170, 0x60, v167
    v_bfe_u32 v17, v0, 2, 2
    v_lshlrev_b32 v17, 6, v17
    v_and_b32 v18, 3, v0
    v_lshl_add_u32 v17, v18, 3, v17
    v_bfe_u32 v18, v0, 4, 1
    v_lshl_add_u32 v19, v18, 5, v17
    v_lshl_add_u32 v171, v3, 9, v19
    v_add_u32 v227, 0x10000, v171
    v_lshl_add_u32 v172, v3, 8, v19
    v_lshl_add_u32 v173, v18, 10, v17
    v_lshl_add_u32 v173, v3, 8, v173
    v_add_u32 v173, s43, v173
    v_add_u32 v230, s43, v1
    s_min_u32 s44, {W}, 2
    s_and_b32 s16, {RB}, 1
    s_mul_i32 s16, s16, 6
    s_add_u32 s16, s16, s44
    s_lshl_b32 s16, s16, 10
    v_add_u32 v228, s16, v172
    v_add_u32 v229, s43, v172
    s_mov_b32 s59, 0x3f803f80
    v_lshlrev_b32 v174, 2, v2
    s_lshl_b32 s16, {C}, 8
    s_add_u32 s33, s16, {CFL}
    s_lshl_b32 s45, {RB32}, 7
    s_add_u32 s45, s45, {XFL}
    v_and_b32 v231, 15, v0
    v_lshlrev_b32 v231, 2, v231
    v_and_b32 v232, 3, v0
    v_lshlrev_b32 v232, 2, v232
    ''')
    assert L_RED % 128 == 0

    def share():
        A(f'''
        v_mov_b32 v210, -1
        v_mov_b32 v211, -1
        s_lshl_b32 s16, {C}, 4
        s_add_u32 s16, s16, {RB}
        s_mul_i32 s16, s16, 2176
        s_add_u32 s16, s16, {KVP}
        s_and_b32 s17, {W}, 1
        s_mul_i32 s17, s17, {KVS}
        s_add_u32 s18, s16, s17
        s_lshl_b32 s17, {W}, 9
        s_add_u32 s16, s16, s17
        s_add_u32 s17, s16, {KVS}
        v_lshlrev_b32 v209, 3, v0
        buffer_store_dwordx2 v[210:211], v209, s[8:11], s16 offen sc1
        buffer_store_dwordx2 v[210:211], v209, s[8:11], s17 offen sc1
        buffer_store_dword v210, v174, s[8:11], s18 offen offset:2048 sc1
        ''')
        tr(A, 196, 'v228', 0)
        tr(A, 200, 'v228', 3072)
        A('ds_write_b128 v230, v[204:207]')
        tr(A, 204, 'v229', 0)
        A(f'''
        s_lshl_b32 s16, {RB}, 2
        s_add_u32 s16, s16, s44
        s_sub_u32 s16, s16, 1
        s_lshl_b32 s17, {RB}, 1
        s_add_u32 s17, s17, 64
        s_cmp_eq_u32 s44, 0
        s_cselect_b32 s16, s17, s16
        s_cselect_b32 s18, 1, 2
        s_lshl_b32 s18, s18, 10
        s_mul_i32 s17, {C}, 96
        s_add_u32 s16, s16, s17
        s_lshl_b32 s16, s16, 10
        s_add_u32 s16, s16, {WQKV}
        s_add_u32 s18, s18, s16
        buffer_store_dwordx4 v[196:199], v1, s[8:11], s16 offen sc1
        buffer_store_dwordx4 v[200:203], v1, s[8:11], s18 offen sc1
        s_lshl_b32 s16, {CB}, 5
        s_add_u32 s16, s16, {RB64}
        s_lshl_b32 s16, s16, 1
        s_and_b32 s17, {W}, 1
        s_add_u32 s16, s16, s17
        s_lshl_b32 s16, s16, 10
        s_add_u32 s16, s16, {WO}
        buffer_store_dwordx4 v[204:207], v1, s[8:11], s16 offen sc1
        ''')
        csum(A, 208, range(196, 204))
        A(f'''
        s_lshl_b32 s16, {C}, 4
        s_add_u32 s16, s16, {RB}
        s_mul_i32 s17, s16, 384
        s_lshl_b32 s18, s44, 7
        s_add_u32 s17, s17, s18
        s_add_u32 s17, s17, {CSQ}
        ''')
        A('buffer_store_dword v208, v174, s[8:11], s17 offen sc1')
        A(f's_mov_b32 s16, 0xffff0000\ns_add_u32 s17, {SOFF}, {ST[0]}')
        for d in range(8):
            A(f'v_lshlrev_b32 {v(112 + 2 * d)}, 16, {v(RES + d)}\nv_and_b32 {v(113 + 2 * d)}, s16, {v(RES + d)}')
        stats_part(A, 112, 192, 's17', 'sc1', tok='pas')
        presample(A, 'v224', 'v232', '0', 's[12:15]')
        for f in range(2):
            r = RES + 4 * f
            A(f'v_permlane32_swap_b32 {v(r)}, {v(r + 2)}\nv_permlane32_swap_b32 {v(r + 1)}, {v(r + 3)}')

    PB = 32

    def p0b_loads():
        A(f'''
        s_mul_i32 s17, {RB}, {32 * 3584}
        s_mul_i32 s18, {C}, 224
        s_add_u32 s17, s17, s18
        s_lshl_b32 s18, {W}, 6
        s_add_u32 s17, s17, s18
        s_add_u32 s18, s17, {16 * 3584}
        buffer_load_dwordx4 {a(PB, 4)}, v161, {SG}, s17 offen {nt}
        buffer_load_dwordx4 {a(PB + 4, 4)}, v161, {SU}, s17 offen {nt}
        buffer_load_dwordx4 {a(PB + 8, 4)}, v161, {SG}, s18 offen {nt}
        buffer_load_dwordx4 {a(PB + 12, 4)}, v161, {SU}, s18 offen {nt}
        s_and_b32 s17, {C}, 1
        s_lshl_b32 s17, s17, 2
        s_add_u32 s17, s17, {W}
        s_min_u32 s66, s17, 6
        s_mul_i32 s17, {RB}, 7
        s_add_u32 s17, s17, s66
        s_lshl_b32 s17, s17, 14
        s_lshl_b32 s18, {CB}, 7
        s_add_u32 s17, s17, s18
        buffer_load_dwordx4 {a(PB + 16, 4)}, v162, {SD}, s17 offen {nt}
        buffer_load_dwordx4 {a(PB + 20, 4)}, v162, {SD}, s17 offen offset:64 {nt}
        ''')

    def p0b_part(n):
        A(f'ds_write_b128 v230, {a(PB + 8 * n, 4)}\nds_write_b128 v230, {a(PB + 8 * n + 4, 4)} offset:1024')
        if n < 2:
            for t in range(2):
                tr(A, 196 + 8 * t + 4 * n, 'v173', 32 * t)
        if n == 1:
            A(f'''
            s_lshl_b32 s17, {C}, 4
            s_add_u32 s17, s17, {RB}
            s_lshl_b32 s17, s17, 10
            s_lshl_b32 s18, {W}, 8
            s_add_u32 s17, s17, s18
            s_add_u32 s48, s17, {CSG}
            ''')
            for t in range(2):
                A(f'''
                s_lshl_b32 s49, {W}, 1
                s_add_u32 s49, s49, {t}
                s_mul_i32 s17, {RB}, 6
                s_add_u32 s17, s17, s49
                s_lshl_b32 s50, s49, 5
                s_lshl_b32 s51, {RB}, 1
                s_add_u32 s50, s50, s51
                s_cmp_lt_u32 s49, 3
                s_cselect_b32 s17, s17, s50
                s_cselect_b32 s50, 3, 1
                s_lshl_b32 s50, s50, 10
                s_mul_i32 s51, {C}, 224
                s_add_u32 s17, s17, s51
                s_lshl_b32 s17, s17, 10
                s_add_u32 s17, s17, {WGU}
                s_add_u32 s50, s50, s17
                ''')
                if t == 1:
                    A(f's_cmp_eq_u32 {W}, 3\ns_cselect_b32 s17, {WS_BYTES}, s17\ns_cselect_b32 s50, {WS_BYTES}, s50')
                A(f'buffer_store_dwordx4 {v(196 + 8 * t, 4)}, v1, s[8:11], s17 offen sc1')
                A(f'buffer_store_dwordx4 {v(200 + 8 * t, 4)}, v1, s[8:11], s50 offen sc1')
                csum(A, 220 + 2 * t, range(196 + 8 * t, 204 + 8 * t))
                A(f'buffer_store_dword {v(220 + 2 * t)}, v174, s[8:11], s48 offen offset:{128 * t} sc1')
        if n == 2:
            tr(A, 212, 'v229', 0)
            tr(A, 216, 'v229', 1024)
            A(f'''
            s_mul_i32 s49, {CB}, 112
            s_lshr_b32 s17, {RB}, 2
            s_mul_i32 s17, s17, 28
            s_add_u32 s49, s49, s17
            s_lshl_b32 s17, s66, 2
            s_add_u32 s49, s49, s17
            s_and_b32 s17, {RB}, 3
            s_add_u32 s49, s49, s17
            s_lshl_b32 s49, s49, 11
            s_add_u32 s49, s49, {WD}
            buffer_store_dwordx4 v[212:215], v1, s[8:11], s49 offen sc1
            ''')
            A('buffer_store_dwordx4 v[216:219], v1, s[8:11], s49 offen offset:1024 sc1', tok='pbs')

    def cs_addr():
        A(f'''
        s_mul_i32 s46, {C}, {16 * 384}
        s_lshl_b32 s17, s44, 7
        s_add_u32 s46, s46, s17
        s_add_u32 s46, s46, {CSQ}
        v_mul_u32_u24 v7, {8 * 384}, v3
        v_add_u32 v7, v7, v174
        s_add_u32 s17, s44, 2
        s_cmp_ge_u32 s17, 3
        s_cselect_b32 s18, 3, 0
        s_sub_u32 s17, s17, s18
        s_lshl_b32 s17, s17, 10
        s_add_u32 s47, s17, {L_XQ}
        ''')
    csl, csf = colsum_frag(A, 240, 's46', 384, 's47', 248)
    wbuf = lambda st, t: WB1 + 12 * (st & 1) + 4 * t
    xbuf = lambda st: 176 + 4 * (st & 3)

    def reads(st):
        jj, kq = divmod(st, 4)
        L = [lambda: (A.wait(f'x{jj}'), A(f'ds_read_b128 {v(xbuf(st), 4)}, {v(167 + kq)} offset:{(jj % 3) * 4096}'))]
        for t in range(3):
            p = (3 * st + t) * KB
            L.append(lambda t=t, p=p: tr(A, wbuf(st, t), 'v171' if p < 65536 else 'v227', p & 65535, 256))
        return L
    addr = k1_addr()
    na = 0
    pend = []
    stat = []
    for st in range(33):
        jj, kq = divmod(st, 4)
        if kq == 0 and st < 32:
            for x in pend:
                x()
            pend = []
            if CFG.get('p1stamps'):
                stamp(A)
            if jj == CFG['arr1']:
                poll(A, 'v232', '0', '1', srd='s[12:15]', pre='v224')
                A(f's_or_b32 s17, {XCC}, 16')
                A.wait('pas')
                flag(A, XFA, 's17', 'sc1')
            A.wait(f'w{jj}')
            A('s_barrier')
            if jj == CFG['arr1']:
                arrive(A, 0)
            if jj in (0, 4) or CFG.get('p1stamps'):
                stamp(A)
        rd = reads(st) if st < 32 else [lambda: None] * 4
        if st == 0:
            for x in rd:
                x()
            share()
            pend = quad_ops(2) + ([p0b_loads] if CFG['pb_issue'] == 2 else [])
            continue
        q = st - 1
        xb = xbuf(q)
        accs = (QT, KT, VT)
        if q % 4 == 3 and q // 4 + PD < 8:
            pend_next = quad_ops(q // 4 + PD) + ([p0b_loads] if CFG['pb_issue'] == q // 4 + PD else [])
        else:
            pend_next = []
        rd[0]()
        for t in range(3):
            acc = v(accs[t], 16)
            ops = (v(wbuf(q, t), 4), v(xb, 4)) if t == 0 else (v(xb, 4), v(wbuf(q, t), 4))
            A(f'{MF} {acc}, {ops[0]}, {ops[1]}, {"0" if q == 0 else acc}')
            rd[1 + t]()
            if pend:
                pend.pop(0)()
            for _ in range(CFG.get('stat_per', 5)):
                if stat:
                    A(stat.pop(0))
        pend += pend_next
        if q >= 4 and na < len(addr):
            A('\n'.join(addr[na:na + 3]))
            na += 3
        if q % 4 == 3:
            jq = q // 4
            for n in range(3):
                if jq == CFG['pb_at'][n]:
                    p0b_part(n)
            if jq == CFG['cs_at'] - 1:
                presample(A, 'v225', 'v13', 's33')
                presample(A, 'v226', 'v231', 's45')
            if jq == CFG['cs_at']:
                poll(A, 'v13', 's33', '16', pre='v225')
                cs_addr()
                csl()
                poll(A, 'v231', 's45', '16', pre='v226')
                A(f's_lshl_b32 s17, {RB32}, 12\ns_add_u32 s17, s17, {ST[0]}')
                stats_load(A, STR1, 's17')
            if jq == CFG['cs_at'] + 1:
                csf()
                r1, r2 = k1_rows()
                stat = stats_combine(STR1, MEAN1, RSTD1, T1, XF1) + r1 + r2
    assert na >= len(addr) and 4 <= CFG['cs_at'] <= 6 and CFG['pb_issue'] - 2 <= CFG['pb_at'][0] <= CFG['pb_at'][1] <= CFG['pb_at'][2] <= 7
    assert 1 <= CFG['arr1'] < CFG['cs_at'] and not pend
    stamp(A)
    A.wait('xfw')
    if CFG['arr2'] == 0:
        A.wait('pbs')
    A('s_barrier')
    if CFG['arr2'] == 0:
        arrive(A, 128)
    for t in range(3):
        A(lds_rd(v(WB1 + 4 * t, 4), L_XQ + t * KB))
    for x in stat:
        A(x)
    A(f'{MF} {v(KT, 16)}, {v(XF1, 4)}, {v(WB1, 4)}, {v(KT, 16)}')
    A(f'{MF} {v(VT, 16)}, {v(XF1, 4)}, {v(WB1 + 4, 4)}, {v(VT, 16)}')
    A(f'{MF} {v(QT, 16)}, {v(WB1 + 8, 4)}, {v(XF1, 4)}, {v(QT, 16)}')
    A(f'v_and_b32 v226, 15, v226\nv_cmp_ne_u32 vcc, {XCC}, v226')
    stamp(A)
    stamp_flush(A, 0)
    if CFG['force_safe']:
        A('s_branch L_safe_epi')
    else:
        A('s_cbranch_vccnz L_safe_epi\ns_branch L_fast_epi')


def wqkv_start(A):
    A(f's_mul_i32 s32, {C}, {96 * KB}\ns_add_u32 s32, s32, s31\ns_add_u32 s32, s32, {WQKV}')
    return Dma(A, 'q', 's32')


BC0 = 'op_sel_hi:[1,0]'
BC1 = 'op_sel:[0,1,0] op_sel_hi:[1,1,1]'


def wd_reg(i):
    i %= 40
    return a(128 + 4 * i, 4) if i < 16 else v(160 + 4 * (i - 16), 4)


class St:
    pass


def wdone(A, S, i):
    st, c = i >> 1, i & 1
    base = 4096 * (st >> 1)
    if base != S.wdbase:
        A(f's_add_u32 s67, s36, {base}')
        S.wdbase = base
    A(f'buffer_load_dwordx4 {wd_reg(i)}, {("v10", "v11")[c]}, s[8:11], s67 offen offset:{(st & 1) * 2048} sc1')


def wdload(A, S, n=1, limit=40):
    for _ in range(n):
        if not S.wdq or S.wdq[0] >= limit:
            return
        wdone(A, S, S.wdq.pop(0))


def wd_early(A, S, n):
    for _ in range(n):
        i = S.wdq.pop(S.wdq.index(40) - 1)
        S.owed.append(i)
        wdone(A, S, i)
    S.wdbase = None


def xload1(A, kg):
    A(f'buffer_load_dwordx4 {a(4 * kg, 4)}, v1, s[8:11], s34 offen offset:{(kg & 3) * 1024} sc1')
    if kg & 3 == 3:
        A('s_add_u32 s34, s34, 4096')


def k1_xpro(A):
    A(f'''
    s_lshl_b32 s34, {LAY}, 22
    s_lshl_b32 s16, {RB32}, 15
    s_add_u32 s34, s34, s16
    s_add_u32 s34, s34, {XB}
    s_lshl_b32 s35, {LAY}, 19
    s_lshl_b32 s16, {RB32}, 12
    s_add_u32 s35, s35, s16
    s_add_u32 s35, s35, {SB}
    ''')
    for kg in range(CFG['xdepth']):
        xload1(A, kg)
        if kg == 3:
            stats_load(A, 112, 's35')


def if_layer(A, lay, fn):
    lab = A.uid('lay')
    A(f's_cmp_lg_u32 {LAY}, {lay}\ns_cbranch_scc1 {lab}')
    fn()
    A.label(lab)


def if_else(A, fn0, fn1):
    lab = A.uid('lay')
    A(f's_cmp_lg_u32 {LAY}, 0\ns_cbranch_scc1 {lab}_1')
    fn0()
    A(f's_branch {lab}_2')
    A.label(lab + '_1')
    fn1()
    A.label(lab + '_2')


def k1(A, m, sc, S):
    WB, STR, MEAN, RSTD, T, XF, RL = WB1, STR1, MEAN1, RSTD1, T1, XF1, RL1
    P = 88
    D = CFG['xdepth']
    xload = lambda kg: xload1(A, kg)
    S.wdq, S.owed, S.wdbase = list(range(56)), [], None
    wd_base = f'''
    s_mul_i32 s36, {CB}, {224 * KB}
    s_mul_i32 s16, {W}, {56 * KB}
    s_add_u32 s36, s36, s16
    s_add_u32 s36, s36, {WD}
    '''

    def wo_all():
        A(f's_lshl_b32 s34, {CB}, 16\ns_lshl_b32 s16, {W}, 14\ns_add_u32 s34, s34, s16\ns_add_u32 s34, s34, {WO}')
        for i in range(16):
            hh, c = i >> 1, i & 1
            A(f'buffer_load_dwordx4 {a(192 + 8 * hh + 4 * c, 4)}, {("v10", "v11")[c]}, s[8:11], s34 offen '
              f'offset:{(hh & 1) * 2048} sc1')
            if i & 3 == 3:
                A('s_add_u32 s34, s34, 4096')
    k1_xpro(A)
    NB, LAG = 6, 3
    buf = lambda p: v(WB + 4 * (p % NB), 4)
    r1, r2 = k1_rows()
    stat = stats_combine(STR, MEAN, RSTD, T, XF) + r1 + r2
    w9 = [lambda: wd_early(A, S, 1)] * CFG['w9_wd']
    groups = []
    for p in range(66 + LAG):
        g = []
        if p == 0:
            g.append(lambda: (A.wait(*[f'q{j}' for j in range(6)]), A('s_barrier')))
        if p < 66:
            g.append(lds_rd(buf(p), p * KB if p < 64 else L_XQ + (p - 64) * KB))
        pre, g = (g, []) if p >= LAG else ([], g)
        if p >= LAG:
            q = p - LAG
            kg, t = q >> 1, q & 1
            xf = a(4 * kg, 4) if kg < 32 else v(XF, 4)
            acc = v((KT, VT)[t], 16)
            g.append(f'{MF} {acc}, {xf}, {buf(q)}, {"0" if kg == 0 else acc}')
            g += pre
            if t == 1 and kg + D < 32:
                g.append(lambda kg=kg: xload(kg + D))
            if kg + D >= 32 and w9 and (t == 1 or len(w9) > 33 - kg):
                g.append(w9.pop())
        groups.append(g)
    emit_with_fill(A, groups[:2 + LAG], [], 0)
    stamp(A)
    even_fill(A, groups[2 + LAG:20], k1_addr())
    even_fill(A, groups[20:64], stat)
    emit_with_fill(A, groups[64:], w9, 0)
    stamp(A)
    A.label(m + '_epi')
    for i in range(0, 16, 2):
        t = T if i & 2 else XF + 8
        A(f'''
        v_pk_mul_f32 {v(t, 2)}, {v(KT + i, 2)}, {v(RL + i, 2)}
        v_pk_fma_f32 {v(KT + i, 2)}, {v(KT + i, 2)}, {v(STR + i, 2)}, s[40:41]
        v_exp_f32_e64 {v(t)}, {v(t)} clamp
        v_exp_f32_e64 {v(t + 1)}, {v(t + 1)} clamp
        v_pk_mul_f32 {v(VT + i, 2)}, {v(VT + i, 2)}, {v(STR + i, 2)}
        v_max_f32 {v(KT + i)}, s40, {v(KT + i)}
        v_max_f32 {v(KT + i + 1)}, s40, {v(KT + i + 1)}
        v_cvt_pk_bf16_f32 {v(P + 16 + i // 2)}, {v(VT + i)}, {v(VT + i + 1)}
        v_pk_add_f32 {v(KT + i, 2)}, {v(KT + i, 2)}, {v(t, 2)}
        v_cvt_pk_bf16_f32 {v(P + 8 + i // 2)}, {v(KT + i)}, {v(KT + i + 1)}
        ''')
        if i == 6:
            A(f'{MF} {v(64, 16)}, {v(P + 16, 4)}, {v(P + 8, 4)}, 0')
    D2 = 64
    A(f'{MF} {v(D2, 16)}, {v(P + 20, 4)}, {v(P + 12, 4)}, {v(D2, 16)}')
    for i in range(4, 16, 4):
        A(f'v_pk_add_f32 {v(KT, 2)}, {v(KT, 2)}, {v(KT + i, 2)}\n'
          f'v_pk_add_f32 {v(KT + 2, 2)}, {v(KT + 2, 2)}, {v(KT + i + 2, 2)}')
    A(f'v_pk_add_f32 {v(KT, 2)}, {v(KT, 2)}, {v(KT + 2, 2)}\nv_add_f32 {v(KT)}, {v(KT)}, {v(KT + 1)}')
    swap_add(A, KT, T)
    A(f'ds_write_b32 v137, {v(KT)} offset:2048')
    for i in range(8):
        A(f'v_cndmask_b32 {v(KT + 1 + i)}, {v(D2 + 8 + i)}, {v(D2 + i)}, s[64:65]')
        A(f'ds_write_b32 v136, {v(KT + 1 + i)} offset:{(8 * (i >> 2) + (i & 3)) * 64}', tok='kvw')
    if CFG['arr2'] == 1:
        if_layer(A, 0, lambda: A.wait('pbs'))
    A.wait('kvw')
    A('s_barrier')
    if CFG['arr2'] == 1:
        if_layer(A, 0, lambda: arrive(A, 128))
    for w in range(4):
        A(f'ds_read_b64 {v(KT + 2 * w, 2)}, v139 offset:{w * 2176}')
        A(f'ds_read_b32 {v(KT + 8 + w)}, v143 offset:{w * 2176}')
    rq = lambda p: lds_rd(buf(p), (64 + p) * KB if p < 32 else L_XQ + 2 * KB)
    A(rq(0))
    A(rq(1))
    A(rq(2))
    A(f'''
    v_pk_add_f32 {v(KT, 2)}, {v(KT, 2)}, {v(KT + 2, 2)}
    v_add_f32 {v(KT + 8)}, {v(KT + 8)}, {v(KT + 9)}
    v_pk_add_f32 {v(KT + 4, 2)}, {v(KT + 4, 2)}, {v(KT + 6, 2)}
    v_add_f32 {v(KT + 10)}, {v(KT + 10)}, {v(KT + 11)}
    v_pk_add_f32 {v(KT, 2)}, {v(KT, 2)}, {v(KT + 4, 2)}
    v_add_f32 {v(KT + 8)}, {v(KT + 8)}, {v(KT + 10)}
    v_min_u32 {v(KT)}, -2, {v(KT)}
    v_min_u32 {v(KT + 1)}, -2, {v(KT + 1)}
    v_min_u32 {v(KT + 8)}, -2, {v(KT + 8)}
    buffer_store_dwordx2 {v(KT, 2)}, v138, s[8:11], s37 offen sc1
    buffer_store_dword {v(KT + 8)}, v142, s[8:11], s37 offen sc1
    ''')
    stamp(A)
    A(f's_mul_i32 s32, {C}, {224 * KB}\ns_add_u32 s32, s32, s31\ns_add_u32 s32, s32, {WGU}')
    G = S.G = Dma(A, 'g', 's32')
    G0 = Dma(A, 'g', 's32')
    l0, f0 = colsum_frag(A, 196, 's16', 1024, 's48', 212)
    l1, f1 = colsum_frag(A, 204, 's17', 1024, 's49', 216)

    def kvload():
        A('s_mov_b32 s43, s37')
        A('buffer_load_dwordx2 v[64:65], v137, s[8:11], s44 offen offset:2048 sc1')
        for i in range(8):
            A(f'buffer_load_dwordx4 {v(16 + 4 * i, 4)}, v136, s[8:11], s43 offen sc1')
            if i < 7:
                A(f's_add_u32 s43, s43, {2 * 2176}')

    def kvcheck():
        A('v_max_u32 v66, v64, v65')
        for i in range(16):
            A(f'v_max3_u32 v66, v66, {v(16 + 2 * i)}, {v(17 + 2 * i)}')
        A('v_cmp_eq_u32 vcc, -1, v66')
    addr2 = f'''
    v_mul_u32_u24 v136, 2176, v3
    v_lshl_add_u32 v136, v2, 4, v136
    v_lshrrev_b32 v137, 2, v0
    v_mul_u32_u24 v137, 2176, v137
    v_and_b32 v138, 3, v0
    v_lshl_add_u32 v137, v138, 3, v137
    s_lshl_b32 s17, {W}, 9
    s_add_u32 s37, s39, s17
    s_lshl_b32 s17, {W}, 5
    s_add_u32 s44, s39, s17
    s_lshr_b32 s16, {W}, 1
    s_lshl_b32 s17, s16, 6
    s_lshl_b32 s18, {W}, 9
    s_add_u32 s17, s17, s18
    s_add_u32 s17, s17, {L_KV}
    v_lshl_add_u32 v142, v2, 4, s17
    s_mul_i32 s16, s16, 1088
    s_and_b32 s17, {W}, 1
    s_lshl_b32 s17, s17, 5
    s_add_u32 s16, s16, s17
    s_add_u32 s16, s16, {L_KV + 1024}
    v_lshl_add_u32 v143, v138, 3, s16
    v_min_u32 v138, 16, v2
    v_lshlrev_b32 v138, 6, v138
    v_lshl_add_u32 v138, v3, 5, v138
    v_add_u32 v138, {L_KV}, v138
    s_lshr_b32 s16, {RB32}, 1
    s_lshl_b32 s17, s16, 7
    s_lshl_b32 s16, s16, 4
    s_add_u32 s16, s16, {C}
    s_lshl_b32 s16, s16, 12
    s_and_b32 s18, {W}, 1
    s_lshl_b32 s19, s18, 10
    s_add_u32 s16, s16, s19
    s_lshl_b32 s19, {LAY}, 21
    s_add_u32 s16, s16, s19
    s_add_u32 s45, s16, {OB}
    s_lshl_b32 s19, {C}, 1
    s_add_u32 s18, s18, s19
    s_lshl_b32 s18, s18, 2
    s_add_u32 s47, s17, s18
    s_add_u32 s46, s47, {OFL}
    s_add_u32 s47, s47, {HFL}
    '''.strip().split('\n')

    def pair_poll_addr(off):
        A(f's_and_b32 s96, s33, {0xffffffff ^ 256}\ns_add_u32 s96, s96, {off}\nv_and_b32 v233, 1, v0\n'
          f'v_lshlrev_b32 v233, 8, v233')
    assert CFL % 512 == 0

    def w1_l0():
        pair_poll_addr(128)
        A('\n'.join(addr2))
        A(wd_base)
        poll(A, 'v233', 's96', '16')
        A(f'''
        s_lshl_b32 s16, {C}, 14
        s_lshl_b32 s17, {W}, 8
        s_add_u32 s16, s16, s17
        s_add_u32 s16, s16, {CSG}
        s_add_u32 s17, s16, 128
        v_lshlrev_b32 v7, 2, v2
        v_lshl_add_u32 v7, v3, 13, v7
        s_lshl_b32 s48, {W}, 11
        s_add_u32 s48, s48, {L_XG}
        s_add_u32 s49, s48, 1024
        ''')
        if CFG.get('l0_wo_at', 1) == 1:
            wo_all()
        G0.emit(CFG['l0_w1_g'])

    def cs_fin():
        f0()
        lab = A.uid('cs')
        A(f's_cmp_eq_u32 {W}, 3\ns_cbranch_scc1 {lab}')
        f1()
        A.label(lab)

    def w1_l1():
        fill = [lambda: G.emit(1, fresh=False)] * CFG['w1_g']
        qg = []
        for p in range(33):
            g = []
            xf = a(4 * p, 4) if p < 32 else v(XF, 4)
            g.append(f'{MF} {v(QT, 16)}, {buf(p)}, {xf}, {"0" if p == 0 else v(QT, 16)}')
            if p + 3 < 33:
                g.append(rq(p + 3))
            if fill:
                g.append(fill.pop(0))
            qg.append(g)
        even_fill(A, qg, addr2)
    if_else(A, w1_l0, w1_l1)
    stamp(A)
    for i in range(0, 16, 2):
        t = T if i & 2 else XF + 8
        A(f'''
        v_pk_mul_f32 {v(t, 2)}, {v(QT + i, 2)}, {v(MEAN, 2)} {BC0}
        v_pk_fma_f32 {v(QT + i, 2)}, {v(QT + i, 2)}, {v(MEAN, 2)}, s[40:41] {BC1}
        v_exp_f32_e64 {v(t)}, {v(t)} clamp
        v_exp_f32_e64 {v(t + 1)}, {v(t + 1)} clamp
        v_max_f32 {v(QT + i)}, s40, {v(QT + i)}
        v_max_f32 {v(QT + i + 1)}, s40, {v(QT + i + 1)}
        v_pk_add_f32 {v(QT + i, 2)}, {v(QT + i, 2)}, {v(t, 2)}
        v_cvt_pk_bf16_f32 {v(P + i // 2)}, {v(QT + i)}, {v(QT + i + 1)}
        ''')
    stamp(A)
    kvload()
    kvcheck()
    A(f's_cbranch_vccz {m}_kvx\ns_mov_b32 s58, 0')
    A.label(m + '_kvr')
    kvload()
    A('s_add_u32 s58, s58, 1')
    kvcheck()
    A(f's_cmp_gt_u32 s58, 0x100000\ns_cbranch_scc1 {m}_kvx\ns_cbranch_vccnz {m}_kvr')
    A.label(m + '_kvx')
    stamp(A)
    tg = G.i + CFG['w2_g']

    def w2_l0():
        A(f's_lshl_b32 s16, {C}, 14\ns_lshl_b32 s17, {W}, 8\ns_add_u32 s16, s16, s17\ns_add_u32 s16, s16, {CSG}\n'
          f's_add_u32 s17, s16, 128')
        l0()
        l1()
        if CFG.get('l0_wo_at', 1) == 2:
            wo_all()
        G0.emit(min(tg, CFG.get('l0_w2_g', 8) + G0.i) - G0.i)
    if_else(A, w2_l0, lambda: G.emit(CFG['w2_g']))
    assert G.i <= 16
    for ror in (4, 8):
        for j in range(2):
            A(f'v_add_f32_dpp {v(66 + j)}, {v(64 + j)}, {v(64 + j)} row_ror:{ror} row_mask:0xf bank_mask:0xf')
        A('v_mov_b32 v64, v66\nv_mov_b32 v65, v67')
    for sw in ('16', '32'):
        A(f'v_permlane{sw}_swap_b32 v66, v64\nv_permlane{sw}_swap_b32 v67, v65\nv_pk_add_f32 v[64:65], v[66:67], v[64:65]')
        if sw == '16':
            A('v_mov_b32 v66, v64\nv_mov_b32 v67, v65')
    A('ds_write_b64 v143, v[64:65]')
    for i in range(1, 8):
        for j in (0, 2):
            A(f'v_pk_add_f32 {v(16 + j, 2)}, {v(16 + j, 2)}, {v(16 + 4 * i + j, 2)}')
    for j in range(4):
        A(f'v_mov_b32 {v(20 + j)}, {v(16 + j)}')
    for j in range(4):
        A(f'v_permlane32_swap_b32 {v(20 + j)}, {v(16 + j)}')
    for j in (0, 2):
        A(f'v_pk_add_f32 {v(16 + j, 2)}, {v(20 + j, 2)}, {v(16 + j, 2)}')
    A('ds_write_b128 v142, v[16:19]', tok='kvt')
    A.wait('kvt')
    A('s_barrier')
    for f in range(2):
        A(f'ds_read_b128 {v(16 + 8 * f, 4)}, v138 offset:{f * 1088}\n'
          f'ds_read_b128 {v(20 + 8 * f, 4)}, v138 offset:{f * 1088 + 16}')
    for f in range(2):
        k = 16 + 8 * f
        for d in range(4):
            A(f'v_cvt_pk_bf16_f32 {v(k + d)}, {v(k + 2 * d)}, {v(k + 2 * d + 1)}')
        A(f'{MF} {v(32 + 16 * f, 16)}, {v(k, 4)}, {v(P + 4 * f, 4)}, 0')
    A(f'''
    s_lshl_b32 s16, {RB64}, 7
    s_lshl_b32 s17, {W}, 5
    s_add_u32 s51, s16, s17
    s_add_u32 s55, s51, {OFL}
    s_add_u32 s51, s51, {HFL}
    v_and_b32 v7, 7, v0
    v_lshlrev_b32 v139, 2, v7
    s_add_u32 s56, {LAY}, 1
    ''')
    for f in range(2):
        d = 32 + 16 * f
        A(f'v_add_f32 {v(T)}, s40, {v(d + 8)}\nv_rcp_f32 {v(T)}, {v(T)}')
        for i in range(0, 8, 2):
            A(f'v_pk_mul_f32 {v(d + i, 2)}, {v(d + i, 2)}, {v(T, 2)} {BC0}')
        for i in range(4):
            A(f'v_cvt_pk_bf16_f32 {v(P + 8 + 4 * f + i)}, {v(d + 2 * i)}, {v(d + 2 * i + 1)}')
        A(f'buffer_store_dwordx4 {v(P + 8 + 4 * f, 4)}, v1, s[8:11], s45 offen offset:{f * 2048} {sc.first}', tok='os')
    if sc.dbl:
        for f in range(2):
            A(f'buffer_store_dwordx4 {v(P + 8 + 4 * f, 4)}, v1, s[8:11], s45 offen offset:{f * 2048} sc1')
    stamp(A)
    A(f'''
    s_lshl_b32 s34, {RB64}, 16
    s_lshl_b32 s17, {W}, 14
    s_add_u32 s34, s34, s17
    s_lshl_b32 s17, {LAY}, 21
    s_add_u32 s34, s34, s17
    s_add_u32 s34, s34, {OB}
    ''')
    tg = G.i + CFG['w3_g']

    def w3():
        if_else(A, lambda: (G0.emit(tg - G0.i), cs_fin()), lambda: G.emit(tg - G.i))
    A.wait('os')
    flag(A, 's46', 's56', sc.f)
    stamp(A)
    w3()


class Red:
    def __init__(self, A, accs, ad, un):
        self.A, self.accs, self.ad, self.un = A, accs, ad, un

    def prep(self):
        L = []
        for sg in (3, 2, 1):
            L += [f's_xor_b32 s16, {W}, {sg}', f's_mul_i32 s16, s16, {3 * 4096}',
                  f's_add_u32 s16, s16, {L_RED + (sg - 1) * 4096}', f'v_add_u32 {v(self.ad + sg)}, s16, v1']
        L += [f's_mul_i32 s16, {W}, {3 * 4096}', f's_add_u32 s16, s16, {L_RED}', f'v_add_u32 {v(self.ad)}, s16, v1',
              's_mov_b32 s17, 0xffff0000']
        for d in range(8):
            L += [f'v_lshlrev_b32 {v(self.un + 2 * d)}, 16, {v(RES + d)}',
                  f'v_and_b32 {v(self.un + 2 * d + 1)}, s17, {v(RES + d)}']
        return L

    def write(self, sg, jj):
        self.A(f'ds_write_b128 {v(self.ad + sg)}, {v(self.accs[sg] + 4 * jj, 4)} offset:{jj * 1024}', tok='red')

    def tail(self, mf, steps):
        pend = []
        for sg in (3, 2, 1, 0):
            for n, st in enumerate(steps):
                mf(st, sg)
                k = 0 if n == 0 else -(-len(pend) // (len(steps) - n))
                for _ in range(k):
                    self.write(*pend.pop(0))
            pend += [(sg, jj) for jj in range(4)] if sg else []
        for x in pend:
            self.write(*x)

    def finish(self):
        A, ac = self.A, self.accs
        A.wait('red')
        A('s_barrier')
        for jj in range(4):
            for sg in range(1, 4):
                A(f'ds_read_b128 {v(ac[sg] + 4 * jj, 4)}, {v(self.ad)} offset:{(sg - 1) * 4096 + jj * 1024}')
        for d in range(8):
            A(f'v_pk_add_f32 {v(ac[0] + 2 * d, 2)}, {v(ac[0] + 2 * d, 2)}, {v(self.un + 2 * d, 2)}')
        for jj in range(4):
            for sg in range(1, 4):
                for i in range(4 * jj, 4 * jj + 4, 2):
                    A(f'v_pk_add_f32 {v(ac[0] + i, 2)}, {v(ac[0] + i, 2)}, {v(ac[sg] + i, 2)}')
            for d in range(2 * jj, 2 * jj + 2):
                A(f'v_cvt_pk_bf16_f32 {v(RES + d)}, {v(ac[0] + 2 * d)}, {v(ac[0] + 2 * d + 1)}')


def publish_addr(j_off):
    return f'''
    s_lshl_b32 s48, {LAY}, 22
    s_add_u32 s48, s48, {TOFF}
    s_add_u32 s48, s48, {XB + j_off * 2048 * KB}
    s_lshl_b32 s49, {LAY}, 19
    s_add_u32 s49, s49, {SOFF}
    s_add_u32 s49, s49, {SB + j_off * 256 * KB}
    s_lshl_b32 s50, {LAY}, 5
    s_add_u32 s50, s50, {16 * (j_off + 1)}
    s_lshl_b32 s42, {RB32}, 7
    s_add_u32 s42, s42, {XFL}
    v_and_b32 v138, 15, v0
    v_lshlrev_b32 v138, 2, v138
    '''


def publish_x(A, sc, window):
    st = lambda f: A(f'buffer_store_dwordx4 {v(RES, 4)}, v1, s[8:11], s48 offen {f}\n'
                     f'buffer_store_dwordx4 {v(RES + 4, 4)}, v1, s[8:11], s48 offen offset:1024 {f}')
    st(sc.first)
    stats_part(A, ACC, 112, 's49', sc.first, tok='xs')
    if sc.dbl:
        st('sc1')
    stamp(A)
    if CFG['win_first']:
        window()
    A.wait('xs')
    flag(A, XFA, 's50', sc.f)
    stamp(A)
    if not CFG['win_first']:
        window()
    poll(A, 'v138', 's42', 's50')
    stamp(A)


def k2(A, m, sc, S):
    G = S.G
    poll(A, 'v139', 's55', 's56')
    stamp(A)
    for hh in range(8):
        for r in range(2):
            A(f'buffer_load_dwordx4 {a(8 * hh + 4 * r, 4)}, {("v8", "v9")[r]}, s[8:11], s34 offen '
              f'offset:{(hh & 1) * 2048} sc1')
        if hh & 1:
            A('s_add_u32 s34, s34, 4096')
    w4 = [lambda: G.emit(1, fresh=False)] * (24 - G.i) + [lambda: wdload(A, S)] * CFG['w4_wd']
    if G.i % 4:
        w4[0] = lambda: G.emit(1)
    R = Red(A, [16, 32, 48, 64], 92, 96)
    A(publish_addr(1))
    for x in R.prep():
        A(x)

    def mf(hh, sg):
        t = v(R.accs[sg], 16)
        A(f'{MF} {t}, {a(192 + 8 * hh + 4 * (sg & 1), 4)}, {a(8 * hh + 4 * (sg >> 1), 4)}, {"0" if hh == 0 else t}')
    nt = CFG['tailmaj']
    for hh in range(8 - nt):
        for sg in (3, 2, 1, 0):
            mf(hh, sg)
            if w4 and CFG['w4_in']:
                w4.pop(0)()
        if hh == 0:
            stamp(A)
    for x in w4:
        x()
    R.tail(mf, list(range(8 - nt, 8)))
    stamp(A)
    R.finish()

    def w5():
        A('s_barrier')
        G.emit(CFG['w5_g'])
        wdload(A, S, CFG['w5_wd'])
        A(f'''
        s_lshl_b32 s34, {LAY}, 22
        s_lshl_b32 s16, {RB32}, 15
        s_add_u32 s34, s34, s16
        s_add_u32 s34, s34, {X[1]}
        s_lshl_b32 s35, {LAY}, 19
        s_lshl_b32 s16, {RB32}, 12
        s_add_u32 s35, s35, s16
        s_add_u32 s35, s35, {ST[1]}
        s_lshr_b32 s16, {RB32}, 1
        s_mul_i32 s16, s16, 112
        s_lshr_b32 s17, {C}, 2
        s_mul_i32 s17, s17, 28
        s_add_u32 s16, s16, s17
        s_and_b32 s17, {C}, 3
        s_add_u32 s16, s16, s17
        s_lshl_b32 s16, s16, 1
        s_and_b32 s17, {W}, 1
        s_add_u32 s16, s16, s17
        s_lshl_b32 s16, s16, 10
        s_mul_i32 s17, {LAY}, {7168 * KB}
        s_add_u32 s16, s16, s17
        s_add_u32 s52, s16, {HB}
        s_lshl_b32 s53, {LAY}, 2
        s_add_u32 s54, s53, 2
        s_add_u32 s53, s53, 1
        s_mul_i32 s37, {RB64}, {224 * KB}
        s_mul_i32 s16, {W}, {56 * KB}
        s_add_u32 s37, s37, s16
        s_add_u32 s37, s37, s17
        s_add_u32 s37, s37, {HB}
        ''')
    publish_x(A, sc, w5)


def hload(A, S, st):
    while S.wdq and S.wdq[0] < 2 * st + 2:
        wdload(A, S, 1, 56)
    for r in range(2):
        A(f'buffer_load_dwordx4 {a(8 * (st % 16) + 4 * r, 4)}, {("v8", "v9")[r]}, s[8:11], s37 offen '
          f'offset:{(st & 1) * 2048} sc1')
    if st & 1:
        A('s_add_u32 s37, s37, 4096')


def k3(A, m, sc, S):
    WB, STR, MEAN, RSTD, T, XF, E = 88, 120, 136, 137, 156, 140, 144
    G = S.G
    D = CFG['xdepth']

    def xload(kg):
        A(f'buffer_load_dwordx4 {a(4 * kg, 4)}, v1, s[8:11], s34 offen offset:{(kg & 3) * 1024} sc1')
        if kg & 3 == 3:
            A('s_add_u32 s34, s34, 4096')
    for kg in range(D):
        xload(kg)
        if kg == 3:
            stats_load(A, STR, 's35')
    items = []
    for kg in range(32):
        for t in range(3):
            items.append((t, kg, (3 * kg + t) * KB, 3 * kg + t))
    for t in range(3):
        items.append((t, 32, L_XG + t * KB, None))
    for t in range(3, 7):
        for kg in range(32):
            p = 32 * t + kg
            items.append((t, kg, (p * KB) % RING, p))
        items.append((t, 32, L_XG + t * KB, None))
    N = len(items)
    accreg = lambda t: ACC + 16 * (t if t < 4 else t - 4)
    NB, LAG = 8, 4
    buf = lambda i: v(WB + 4 * (i % NB), 4)

    def epi(t):
        g = accreg(t)
        pk = 120 + 4 * (t & 1)
        mul = lambda i: f'v_mul_f32 {v(E + i)}, {v(MEAN)}, {v(g + i)}'
        ex = lambda i: f'v_exp_f32 {v(E + i)}, {v(E + i)}'
        fm = lambda i: f'v_fma_f32 {v(E + i)}, {v(E + i)}, {v(RSTD)}, {v(RSTD)}'
        rc = lambda i: f'v_rcp_f32 {v(E + i)}, {v(E + i)}'
        mu = lambda i: f'v_mul_f32 {v(E + i)}, {v(E + i)}, {v(g + 8 + i)}'
        cv = lambda i: f'v_cvt_pk_bf16_f32 {v(pk + i // 2)}, {v(E + i)}, {v(E + i + 1)}'
        L = []
        for s_ in range(8 + 4):
            for fn, d in ((mul, 0), (ex, 1), (fm, 2), (rc, 3), (mu, 4)):
                if 0 <= s_ - d < 8:
                    L.append(fn(s_ - d))
            if s_ - 4 >= 1 and (s_ - 4) % 2 == 1:
                L.append(cv(s_ - 5))
        L.append(lambda: (A(f'buffer_store_dwordx4 {v(pk, 4)}, v1, s[8:11], s52 offen {sc.h}', tok=f'h{t}'),
                          A(f's_add_u32 s52, s52, {8 * KB}')))
        return L
    stat = stats_combine(STR, MEAN, RSTD, T, XF)
    stat += [f'v_mul_f32 {v(MEAN)}, {f2u(-LOG2E)}, {v(RSTD)}', f'v_rcp_f32 {v(RSTD)}, {v(RSTD)}']
    mem = {}

    def spread(lo, hi, fns):
        for k, fn in enumerate(fns):
            mem.setdefault(lo + (hi - lo) * k // max(len(fns), 1), []).append(fn)
    dma1 = lambda: G.emit(1, fresh=False)
    wd1 = lambda: wdload(A, S)
    have = G.i
    kw = CFG['k3_wd']
    spread(4, 24, [dma1] * (36 - have))
    spread(36, 90, [dma1] * 4 + [wd1] * kw[0])
    spread(100, 130, [dma1] * 8 + [wd1] * kw[1])
    spread(133, 163, [dma1] * 8 + [wd1] * kw[2])
    spread(166, 196, [wd1] * kw[3])
    he = CFG['hearly']
    spread(199, 215, [wd1] * kw[4])
    mem.setdefault(CFG['fa_q'], []).append(lambda: (A.wait('h2'), flag(A, 's47', 's53', sc.f)))
    hq = CFG['hpre_q']
    mem.setdefault(hq, []).append(lambda: presample(A, 'v158', 'v139', 's51'))
    mem.setdefault(hq + 6, []).append(lambda: poll(A, 'v139', 's51', 's53', pre='v158'))
    for st in range(he):
        mem.setdefault(max(hq + 7 + (229 - hq - 7) * st // he, 199 + 2 * st), []).append(lambda st=st: hload(A, S, st))
    groups = []
    for i in range(N + LAG):
        g = []
        pre = []
        if i < N:
            t, kg, ad, p = items[i]
            if p == 0:
                pre.append(lambda: (A.wait(*[f'g{q}' for q in range(6)], 'xfw'), A('s_barrier')))
            elif p == 30:
                pre.append('s_barrier')
            elif p is not None and p >= 96 and p % 32 == 0:
                if CFG['k3stamps']:
                    pre.append(lambda: stamp(A))
                pre.append(lambda j=p // 16: (A.wait(f'g{j}', f'g{j + 1}'), A('s_barrier')))
                if CFG['k3stamps']:
                    pre.append(lambda: stamp(A))
            pre.append(lds_rd(buf(i), ad))
        if i >= LAG:
            q = i - LAG
            t, kg, ad, p = items[q]
            if q % 2 == 0 and i + 1 < N and q > 0:
                g.append(f's_waitcnt lgkmcnt({LAG - 2})')
            xf = a(4 * kg, 4) if kg < 32 else v(XF, 4)
            acc = v(accreg(t), 16)
            g.append(f'{MF} {acc}, {buf(q)}, {xf}, {"0" if kg == 0 else acc}')
            g += pre
            if q < 96 and t == 2 and kg + D < 32:
                g.append(lambda kg=kg: xload(kg + D))
            g += mem.get(q, [])
        else:
            g = pre
        groups.append(g)
    b = lambda t: 99 + 33 * t + LAG + 1
    emit_with_fill(A, groups[:3 + LAG], [], 0)
    stamp(A)
    emit_with_fill(A, groups[3 + LAG:30], [], 0)
    even_fill(A, groups[30:92], stat)
    emit_with_fill(A, groups[92:b(0)], [], 0)
    stamp(A)
    e = [epi(t) for t in range(7)]
    hf = len(e[0]) // 2
    even_fill(A, groups[b(0):b(1) - 2], e[0] + e[1][:hf])
    emit_with_fill(A, groups[b(1) - 2:b(1)], [], 0)
    even_fill(A, groups[b(1):b(2) - 2], e[1][hf:] + e[2])
    emit_with_fill(A, groups[b(2) - 2:b(2)], [], 0)
    even_fill(A, groups[b(2):b(3)], e[3] + e[4][:hf])
    even_fill(A, groups[b(3):], e[4][hf:] + e[5])
    assert G.i == 56, G.i
    stamp(A)
    S.e6 = e[6]


def k4(A, m, sc, S):
    D = CFG['hdepth']
    he = CFG['hearly']
    R = Red(A, [16, 32, 88, 64], 104, 48)
    nq = CFG['k4_q']
    Qs = []

    def l0_q(n):
        if_layer(A, 0, lambda: Qs[0].emit(n))

    def mf(st, sg):
        t = v(R.accs[sg], 16)
        A(f'{MF} {t}, {wd_reg(2 * st + (sg & 1))}, {a(8 * (st % 16) + 4 * (sg >> 1), 4)}, {"0" if st == 0 else t}')
    nt = CFG['tailmaj']
    nxt = [he]

    def more(st):
        n = nxt[0]
        if n >= 12 and st < CFG['cchk']:
            wdload(A, S, CFG['k4_wd'], 40 + 2 * st)
            return
        if n >= 28 or n > st + D:
            return
        if n == 12:
            stamp(A)
            poll(A, 'v139', 's51', 's54', pre='v158')
            stamp(A)
        hload(A, S, n)
        nxt[0] += 1
        if nxt[0] == 28:
            l0_q(CFG['w7_q'] + nq - Qs[0].i)
    assert he <= 9 and min(S.owed + [99]) >= 2 * CFG['pay_at'] + 24

    def pay():
        S.wdbase = None
        while S.owed:
            wdone(A, S, S.owed.pop())
        S.wdbase = None
    groups = []
    for st in range(28 - nt):
        for sg in (3, 2, 1, 0):
            g = [lambda st=st, sg=sg: mf(st, sg)]
            if sg & 1:
                g.append(lambda st=st: more(st))
            if sg == 0 and st == 0:
                g.append(lambda: stamp(A))
            if sg == 0 and st == 1:
                g.append(lambda: (A('s_barrier'), Qs.append(wqkv_start(A))))
            if sg == 0 and st == CFG['pay_at'] and S.owed:
                g.append(lambda: if_layer(A, 0, pay))
            if sg == 0 and st == CFG['fc_at']:
                g.append(lambda: (A.wait('h6'), flag(A, 's47', 's54', sc.f)))
            if sg == 0 and st == CFG['cchk'] - 2:
                g.append(lambda: presample(A, 'v158', 'v139', 's51'))
            if sg == 0 and st % 3 == 2:
                g.append(lambda: l0_q(min(2, nq - Qs[0].i)) if Qs[0].i < nq and nxt[0] < 28 else None)
            groups.append(g)
    ne = CFG['e6_groups']
    assert ne <= 4 * CFG['fc_at'] + 3 and CFG['fc_at'] < CFG['cchk']
    even_fill(A, groups[:ne], S.e6)
    emit_with_fill(A, groups[ne:-32], [], 0)
    even_fill(A, groups[-32:], publish_addr(2).strip().split('\n') + R.prep())
    assert nxt[0] == 28
    R.tail(mf, list(range(28 - nt, 28)))
    Q = Qs[0]
    stamp(A)
    R.finish()
    A(f's_cmp_lg_u32 {LAY}, 0\ns_cbranch_scc1 {m}_final')
    publish_x(A, sc, lambda: Q.upto(6))
    stamp(A, True)
    n = NST[0]
    stamp_flush(A, 1)
    A(f's_mov_b32 {LAY}, 1\ns_branch {m}')
    A.label(m + '_final')
    for f in range(2):
        r = RES + 4 * f
        A(f'v_permlane32_swap_b32 {v(r)}, {v(r + 2)}\nv_permlane32_swap_b32 {v(r + 1)}, {v(r + 3)}')
    A(f'''
    s_mov_b64 s[12:13], s[60:61]
    s_mov_b32 s14, {2048 * KB}
    s_mov_b32 s15, 0x20000
    v_lshlrev_b32 v7, 10, v2
    v_lshl_add_u32 v7, v3, 4, v7
    buffer_store_dwordx4 {v(RES, 4)}, v7, s[12:15], s57 offen {CFG['fin_sc']}
    buffer_store_dwordx4 {v(RES + 4, 4)}, v7, s[12:15], s57 offen offset:32 {CFG['fin_sc']}
    ''')
    if CFG['diag']:
        NST[0] = n - 2
        A('s_waitcnt vmcnt(0)')
        stamp(A)
        stamp(A, True)
        stamp_flush(A, 2)
    A('s_endpgm')


def body(A, m, sc):
    S = St()
    A.label(m)
    NST[0] = 0
    stamp(A)
    k1(A, m, sc, S)
    k2(A, m, sc, S)
    k3(A, m, sc, S)
    k4(A, m, sc, S)


def build(cfg=None):
    if cfg:
        CFG.update(cfg)
    A = Asm()
    A('.p2align 8')
    A.label(KN)
    p0(A)
    from types import SimpleNamespace as NS
    body(A, 'L_fast', NS(first='' if CFG['dbl'] else 'sc1', dbl=CFG['dbl'], h='sc1', f=''))
    body(A, 'L_safe', NS(first='sc1', dbl=0, h='sc1', f='sc1'))
    A.label('L_end')
    A('s_endpgm')
    mx = A.maxreg()
    assert mx['v'] < 256 and mx['a'] < 256 and mx['s'] < 100, mx
    txt = A.finalize([KN])
    head = f'; @launch grid=(256,1,1) block=(256,1,1) lds={LDS}\n'
    head += f'.amdgcn_target "amdgcn-amd-amdhsa--gfx950"\n.text\n.globl {KN}\n.type {KN},@function\n'
    tail = f'''
.section .rodata,"a"
.p2align 6
.amdhsa_kernel {KN}
  .amdhsa_next_free_vgpr 512
  .amdhsa_next_free_sgpr 100
  .amdhsa_accum_offset 256
  .amdhsa_group_segment_fixed_size 0
  .amdhsa_kernarg_size 80
  .amdhsa_user_sgpr_count 2
  .amdhsa_user_sgpr_kernarg_segment_ptr 1
  .amdhsa_system_sgpr_workgroup_id_x 1
  .amdhsa_float_denorm_mode_32 3
.end_amdhsa_kernel
'''
    return head + txt + tail


if __name__ == '__main__':
    import json
    out = sys.argv[1] if len(sys.argv) > 1 else f'cdna_kernels/{NAME}.s'
    cfg = json.loads(sys.argv[2]) if len(sys.argv) > 2 else None
    open(out, 'w').write(build(cfg))
    print('wrote', out)
```
